```python
import torch

def _softmax(x, axis=-1):
    return torch.softmax(x, dim=axis)

def _gelu(x):
    return torch.nn.functional.gelu(x, approximate='tanh')

def _silu(x):
    return torch.nn.functional.silu(x)

def _sigmoid(x):
    return torch.sigmoid(x)

def _layernorm(x, axis=-1, eps=1e-05):
    m = x.mean(dim=axis, keepdim=True)
    v = x.var(dim=axis, keepdim=True, unbiased=False)
    return (x - m) / torch.sqrt(v + eps)

def _scatter_add(tgt, idx, src, axis=0):
    return tgt.clone().index_add_(axis, idx, src)

def _segment_sum(src, seg, n):
    out = torch.zeros((n,) + src.shape[1:], dtype=src.dtype)
    return out.index_add_(0, seg, src)

def _pad(x, pw):
    flat = tuple((v for pair in reversed(pw) for v in pair))
    return torch.nn.functional.pad(x, flat)
kernel_name = 'standalone__autoregressive_conv_wavernn__speech'

def setup_inputs():

    _w = lambda a: (lambda t: t.to(torch.bfloat16) if t.is_floating_point() else t)(torch.as_tensor(a))
    B, T, D, K = (2, 16000, 144, 31)
    return {'x': _w((lambda *s: torch.randn(*s, dtype=torch.bfloat16) * 0.1)(B, T, D)), 'w': _w((lambda *s: torch.randn(*s, dtype=torch.bfloat16) * 0.1)(K, D, 2 * D))}

def reference(x, w):
    B, T, D = x.shape
    K = w.shape[0]
    dil = 2
    pad = (K - 1) * dil
    xp = _pad(x, ((0, 0), (pad, 0), (0, 0)))
    h = torch.einsum('btd,de->bte', xp[:, 0:T, :], w[0])
    for i in range(1, K):
        h = h + torch.einsum('btd,de->bte', xp[:, i * dil:i * dil + T, :], w[i])
    f, g = (h[..., :D].clone(), h[..., D:].clone())
    return torch.tanh(f) * _sigmoid(g)
```

```python
import sys
NAME = 'standalone__autoregressive_conv_wavernn__speech'
def kd(name, vg, acc, sg=102):
    return f""".amdhsa_kernel {name}
  .amdhsa_next_free_vgpr {vg}
  .amdhsa_next_free_sgpr {sg}
  .amdhsa_accum_offset {acc}
  .amdhsa_group_segment_fixed_size 0
  .amdhsa_kernarg_size 40
  .amdhsa_user_sgpr_count 2
  .amdhsa_user_sgpr_kernarg_segment_ptr 1
  .amdhsa_system_sgpr_workgroup_id_x 1
.end_amdhsa_kernel"""
def gen(n_pre=0, n_post=0):
    L = []; A = L.append
    if n_pre or n_post:
        for i in range(n_pre): A("; @launch kernel=nop_kernel grid=(256,1,1) block=(256,1,1) lds=0")
        A(f"; @launch kernel={NAME}_kernel grid=(250,1,1) block=(256,1,1) lds=83968")
        for i in range(n_post): A("; @launch kernel=nop_kernel grid=(256,1,1) block=(256,1,1) lds=0")
    else:
        A("; @launch grid=(250,1,1) block=(256,1,1) lds=83968")
    A('.amdgcn_target "amdgcn-amd-amdhsa--gfx950"\n.text')
    if n_pre or n_post:
        A(".globl nop_kernel\n.p2align 8\n.type nop_kernel,@function\nnop_kernel:\ns_endpgm")
    A(f".globl {NAME}_kernel\n.p2align 8\n.type {NAME}_kernel,@function\n{NAME}_kernel:")
    A("s_cmp_ge_u32 s2, 250\ns_cbranch_scc1 L_end")
    A("s_load_dwordx4 s[4:7], s[0:1], 0\ns_load_dwordx2 s[20:21], s[0:1], 16")
    A("s_cmp_ge_u32 s2, 125\ns_cselect_b32 s22, 4608000, 0\ns_cselect_b32 s23, 125, 0\ns_sub_u32 s23, s2, s23")
    A("s_waitcnt lgkmcnt(0)")
    A("s_add_u32 s8, s4, s22\ns_addc_u32 s9, s5, 0\ns_mov_b32 s10, 4608000\ns_mov_b32 s11, 0x00020000")
    A("s_mov_b32 s12, s6\ns_mov_b32 s13, s7\ns_mov_b32 s14, 2571264\ns_mov_b32 s15, 0x00020000")
    A("s_add_u32 s16, s20, s22\ns_addc_u32 s17, s21, 0\ns_mov_b32 s18, 4608000\ns_mov_b32 s19, 0x00020000")
    A("v_and_b32 v1, 63, v0\nv_lshrrev_b32 v2, 6, v0\ns_nop 0\nv_readfirstlane_b32 s24, v2")
    A("v_and_b32 v3, 31, v1\nv_lshl_add_u32 v3, v2, 5, v3\ns_lshl_b32 s25, s23, 7\nv_add_u32 v3, s25, v3")
    A("s_movk_i32 s26, 288\nv_mul_lo_u32 v4, v3, s26\nv_lshrrev_b32 v5, 5, v1")
    A("v_lshl_add_u32 v6, v5, 3, v4")
    A("v_lshl_add_u32 v4, v5, 4, v4\nv_subrev_u32 v4, 17280, v4")
    A("v_and_b32 v7, 15, v1\nv_lshrrev_b32 v8, 2, v7\nv_lshl_add_u32 v8, v5, 3, v8\ns_movk_i32 s26, 576\nv_mul_lo_u32 v8, v8, s26")
    A("v_and_b32 v7, 3, v1\nv_lshl_add_u32 v8, v7, 3, v8\nv_bfe_u32 v7, v1, 4, 1\ns_movk_i32 s26, 288\nv_mul_lo_u32 v7, v7, s26\nv_add_u32 v8, v8, v7")
    A("v_add_u32 v9, 46080, v8")
    A("v_lshlrev_b32 v10, 4, v0")
    for i in range(144): A(f"v_accvgpr_write_b32 a{i}, 0")
    A("s_mov_b32 s27, 0\ns_mov_b32 s28, 0")
    A("L_tap:")
    A("s_barrier")
    A("s_lshl_b32 s29, s24, 10\ns_mov_b32 s30, s28")
    for j in range(21):
        if j == 20:
            A("s_cmp_lg_u32 s24, 0\ns_cbranch_scc1 L_skip")
        A("s_mov_b32 m0, s29\ns_nop 0")
        A("buffer_load_dwordx4 v10, s[12:15], s30 offen lds")
        A("s_add_u32 s29, s29, 4096\ns_add_u32 s30, s30, 4096")
    A("L_skip:")
    for kc in range(9):
        A(f"buffer_load_dwordx4 v[{16+4*kc}:{19+4*kc}], v4, s[8:11], 0 offen offset:{32*kc}")
    A("s_waitcnt vmcnt(0)\ns_barrier")
    for kc in range(9):
        base = 'v8' if kc < 5 else 'v9'
        ko = kc if kc < 5 else kc-5
        for q in range(9):
            for u in range(2):
                A(f"ds_read_b64_tr_b16 v[{64+4*q+2*u}:{65+4*q+2*u}], {base} offset:{(ko*16+4*u)*576+32*q}")
        for q in range(9):
            A(f"s_waitcnt lgkmcnt({min(15, 16-2*q)})")
            A(f"v_mfma_f32_32x32x16_bf16 a[{16*q}:{16*q+15}], v[{64+4*q}:{67+4*q}], v[{16+4*kc}:{19+4*kc}], a[{16*q}:{16*q+15}]")
    A("v_add_u32 v4, 576, v4\ns_add_u32 s28, s28, 82944\ns_add_u32 s27, s27, 1\ns_cmp_lt_u32 s27, 31\ns_cbranch_scc1 L_tap")
    A("s_nop 15")
    A("s_mov_b32 s30, 0xc038aa3b\ns_mov_b32 s31, 0xbfb8aa3b")
    for q in range(9):
        for r in range(8):
            A(f"v_accvgpr_read_b32 v20, a{16*q+r}\nv_accvgpr_read_b32 v21, a{16*q+8+r}")
            A("v_mul_f32 v20, s30, v20\nv_mul_f32 v21, s31, v21\nv_exp_f32 v20, v20\nv_exp_f32 v21, v21\ns_nop 0")
            A("v_add_f32 v20, 1.0, v20\nv_add_f32 v21, 1.0, v21\nv_rcp_f32 v20, v20\nv_rcp_f32 v21, v21\ns_nop 0")
            A(f"v_fma_f32 v20, v20, 2.0, -1.0\nv_mul_f32 v{24+r}, v20, v21")
        A("v_cvt_pk_bf16_f32 v32, v24, v25\nv_cvt_pk_bf16_f32 v33, v26, v27\nv_cvt_pk_bf16_f32 v34, v28, v29\nv_cvt_pk_bf16_f32 v35, v30, v31")
        A(f"buffer_store_dwordx2 v[32:33], v6, s[16:19], 0 offen offset:{32*q}")
        A(f"buffer_store_dwordx2 v[34:35], v6, s[16:19], 0 offen offset:{32*q+16}")
        A("s_waitcnt vmcnt(0)")
    A("L_end:\ns_endpgm")
    A('.section .rodata,"a"\n.p2align 6')
    A(kd(NAME+'_kernel', 256, 112))
    if n_pre or n_post:
        A(".p2align 6"); A(kd('nop_kernel', 8, 8, 16))
    return "\n".join(L)+"\n"
if __name__ == '__main__':
    open('base0.s','w').write(gen())
    open('base_pre1.s','w').write(gen(1,0))
    open('base_pre4.s','w').write(gen(4,0))
    open('base_post4.s','w').write(gen(0,4))
```

```python
import gen_base as gb
NAME = gb.NAME
def with_pre(body, grid, block=256, vg=64):
    s = gb.gen(1, 0)
    s = s.replace("kernel=nop_kernel grid=(256,1,1) block=(256,1,1)", f"kernel=nop_kernel grid=({grid},1,1) block=({block},1,1)")
    s = s.replace("nop_kernel:\ns_endpgm", "nop_kernel:\n" + f"s_cmp_ge_u32 s2, {grid}\ns_cbranch_scc1 L_pend\n" + body + "\nL_pend:\ns_endpgm")
    s = s.replace(gb.kd('nop_kernel', 8, 8, 16), gb.kd('nop_kernel', vg, vg, 64))
    return s
SRD = """s_load_dwordx4 s[4:7], s[0:1], 0
s_load_dwordx2 s[20:21], s[0:1], 32
s_waitcnt lgkmcnt(0)
s_mov_b32 s8, s4
s_mov_b32 s9, s5
s_mov_b32 s10, 9216000
s_mov_b32 s11, 0x00020000
s_mov_b32 s12, s20
s_mov_b32 s13, s21
s_mov_b32 s14, 0x10000000
s_mov_b32 s15, 0x00020000
s_mov_b32 s16, s6
s_mov_b32 s17, s7
s_mov_b32 s18, 2571264
s_mov_b32 s19, 0x00020000
"""
def chain(srd, stride, n=64):
    b = SRD + f"v_lshlrev_b32 v1, 2, v0\nv_and_b32 v1, 63, v1\ns_mov_b32 s30, {n}\nL_ch:\nbuffer_load_dword v2, v1, {srd}, 0 offen\ns_waitcnt vmcnt(0)\nv_add_u32 v1, {stride}, v1\ns_sub_u32 s30, s30, 1\ns_cmp_lg_u32 s30, 0\ns_cbranch_scc1 L_ch"
    return with_pre(b, 1, 64)
def k1(readx, nw, st=''):
    b = SRD + "v_lshlrev_b32 v1, 4, v0\n"
    b += "s_mul_i32 s3, s2, 10240\nv_add_u32 v2, s3, v1\n"
    for i in range(9, 12):
        b += f"buffer_load_dwordx4 v[{8+4*i}:{11+4*i}], v2, s[16:19], 0 offen\nv_add_u32 v2, 4096, v2\n"
    if readx:
        b += "s_mul_i32 s3, s2, 36864\nv_add_u32 v2, s3, v1\n"
        for i in range(9):
            b += f"buffer_load_dwordx4 v[{8+4*i}:{11+4*i}], v2, s[8:11], 0 offen\nv_add_u32 v2, 4096, v2\n"
    b += "s_waitcnt vmcnt(0)\n"
    b += f"s_mul_i32 s3, s2, {nw*4096}\nv_add_u32 v2, s3, v1\n"
    for i in range(nw):
        r = 44 + 4*(i % 3)
        b += f"buffer_store_dwordx4 v[{r}:{r+3}], v2, s[12:15], 0 offen {st}\nv_add_u32 v2, 4096, v2\n"
    return with_pre(b, 256)
open('pr_chain_x_big.s','w').write(chain('s[8:11]', 131072+256))
open('pr_chain_x_small.s','w').write(chain('s[8:11]', 512))
open('pr_chain_ws_big.s','w').write(chain('s[12:15]', 131072+256))
open('pr_chain_w_big.s','w').write(chain('s[16:19]', 32768+256))
open('pr_k1_rw0.s','w').write(k1(True, 0))
open('pr_k1_rw22.s','w').write(k1(True, 22))
open('pr_k1_rw15.s','w').write(k1(True, 15))
open('pr_k1_w5.s','w').write(k1(False, 5))
open('pr_k1_rw5.s','w').write(k1(True, 5))
```

```python
import struct, sys
NAME = 'standalone__autoregressive_conv_wavernn__speech'

XQ = 48384
FS = 4*XQ
WF = 165888
YB = 73728
XH = 0
WH = 13 << 20
YH = 24 << 20
TB = 48 << 20
STAMP = 64 << 20
WS_BYTES = 268435456
XB = 4608000

def fbits(x): return "0x%08x" % struct.unpack('<I', struct.pack('<f', x))[0]

class Asm:
    def __init__(self): self.L = []
    def __call__(self, s):
        for t in s.split('\n'):
            t = t.strip()
            if t: self.L.append(t if (t.endswith(':') or t.startswith('.') or t.startswith(';')) else '    ' + t)
    def text(self): return "\n".join(self.L) + "\n"

def kd(name, vg, acc, sg=96):
    return f""".p2align 6
.amdhsa_kernel {name}
  .amdhsa_next_free_vgpr {vg}
  .amdhsa_next_free_sgpr {sg}
  .amdhsa_accum_offset {acc}
  .amdhsa_group_segment_fixed_size 0
  .amdhsa_kernarg_size 40
  .amdhsa_user_sgpr_count 2
  .amdhsa_user_sgpr_kernarg_segment_ptr 1
  .amdhsa_system_sgpr_workgroup_id_x 1
  .amdhsa_float_denorm_mode_32 3
.end_amdhsa_kernel"""

def entry(A, name):
    A(f".globl {name}\n.p2align 8\n.type {name},@function\n{name}:")

def srd(A, d, lo, hi, nbytes):
    A(f"s_mov_b32 s{d}, {lo}\ns_mov_b32 s{d+1}, {hi}\ns_mov_b32 s{d+2}, {nbytes}\ns_mov_b32 s{d+3}, 0x00020000")

class Stamps:
    def __init__(self, on): self.on = on
    def mark(self, A, i):
        if self.on: A(f"s_memrealtime s[{70+2*i}:{71+2*i}]")
    def flush(self, A, kern, wv, tag):
        if not self.on: return
        A("s_waitcnt vmcnt(0)\ns_barrier\ns_memrealtime s[84:85]\ns_waitcnt lgkmcnt(0)")
        A(f"s_cmp_lg_u32 {wv}, 0\ns_cbranch_scc1 L_nostamp_{tag}")
        A(f"s_lshl_b32 s68, s2, 5\ns_add_u32 s68, s68, {STAMP + kern*65536}\nv_mov_b32 v8, s68")
        A("s_mov_b64 exec, 1")
        for i in range(8): A(f"v_mov_b32 v{i}, s{70+2*i}")
        A("buffer_store_dwordx4 v[0:3], v8, s[12:15], 0 offen\nbuffer_store_dwordx4 v[4:7], v8, s[12:15], 0 offen offset:16")
        A(f"L_nostamp_{tag}:")

def gen_cos(A, dst, nfrag, vinc, vph, t0, scale=None):
    for ks in range(nfrag):
        for jj in range(8):
            A(f"v_fmamk_f32 v{t0+jj}, {vinc}, {fbits(float(16*ks+jj))}, {vph}")
        for jj in range(8): A(f"v_fract_f32 v{t0+jj}, v{t0+jj}")
        for jj in range(8): A(f"v_cos_f32 v{t0+jj}, v{t0+jj}")
        if scale:
            for jj in range(8): A(f"v_mul_f32 v{t0+jj}, {scale}, v{t0+jj}")
        for jj in range(4): A(f"v_cvt_pk_bf16_f32 v{dst+4*ks+jj}, v{t0+2*jj}, v{t0+2*jj+1}")

def row_phase(A, wv):
    A(f"v_and_b32 v6, 30, v1\nv_or_b32 v6, 1, v6\ns_lshl_b32 s3, {wv}, 5\nv_add_u32 v6, s3, v6")
    A(f"v_cvt_f32_u32 v6, v6\nv_mul_f32 v6, {fbits(1/256)}, v6")
    A("v_lshrrev_b32 v7, 5, v1\nv_lshlrev_b32 v7, 3, v7\nv_cvt_f32_u32 v7, v7\nv_mul_f32 v7, v7, v6")
    A(f"v_and_b32 v8, 1, v1\nv_cvt_f32_u32 v8, v8\nv_fmac_f32 v7, {fbits(0.25)}, v8")

def k1(A, o):
    st = Stamps(o['stamps'])
    entry(A, 'xform_kernel')
    st.mark(A, 0)
    A("s_cmp_ge_u32 s2, 256\ns_cbranch_scc1 L_k1_end")
    A("s_load_dwordx4 s[4:7], s[0:1], 0\ns_load_dwordx2 s[8:9], s[0:1], 32")
    A("v_and_b32 v1, 63, v0\nv_lshrrev_b32 v2, 6, v0\ns_and_b32 s21, s2, 7\nv_readfirstlane_b32 s20, v2\ns_lshr_b32 s22, s2, 3")
    A("s_cmp_ge_u32 s22, 21\ns_cbranch_scc1 L_k1_notx")
    A("s_mul_i32 s23, s21, 21\ns_add_u32 s23, s23, s22")
    A(f"s_cmp_ge_u32 s23, 84\ns_cselect_b32 s24, {XB}, 0\ns_cselect_b32 s25, 84, 0\ns_sub_u32 s25, s23, s25")
    A(f"s_mul_i32 s26, s25, {192*288}\ns_sub_u32 s26, s26, {64*288}\ns_mul_i32 s27, s20, {18*1024}\ns_add_u32 s26, s26, s27")
    A("v_lshl_add_u32 v2, v1, 4, s26\ns_mov_b32 m0, s27")
    A("s_waitcnt lgkmcnt(0)")
    A(f"s_add_u32 s16, s4, s24\ns_addc_u32 s17, s5, 0\ns_mov_b32 s18, {XB}\ns_mov_b32 s19, 0x00020000")
    for i in range(18):
        A(f"buffer_load_dwordx4 v2, s[16:19], 0 offen {o['xpol']} lds")
        if i < 17: A("s_add_u32 m0, m0, 1024\nv_add_u32 v2, 1024, v2")
    srd(A, 12, 's8', 's9', WS_BYTES)
    row_phase(A, 's20')
    E, B, D = 16, 48, 112
    gen_cos(A, E, 8, 'v6', 'v7', 8)
    A("v_bfe_u32 v8, v1, 2, 2\nv_lshrrev_b32 v9, 5, v1\nv_lshl_add_u32 v8, v9, 3, v8\nv_mul_u32_u24 v4, 576, v8")
    A("v_bfe_u32 v8, v1, 1, 1\nv_mul_u32_u24 v8, 288, v8\nv_add_u32 v4, v4, v8")
    A("v_bfe_u32 v8, v1, 4, 1\nv_lshl_add_u32 v4, v8, 4, v4\nv_and_b32 v8, 1, v1\nv_lshl_add_u32 v4, v8, 3, v4\nv_add_u32 v5, 36864, v4")
    A("s_mul_i32 s28, s23, 1561\ns_lshr_b32 s28, s28, 16\ns_mul_i32 s29, s28, 42\ns_sub_u32 s29, s23, s29")
    A("s_and_b32 s30, s29, 4\ns_bfe_u32 s31, s29, 0x10001\ns_or_b32 s30, s30, s31\ns_lshl_b32 s30, s30, 4")
    A(f"s_mul_i32 s28, s28, {XQ}\ns_lshl_b32 s29, s29, 7\ns_add_u32 s28, s28, s29\ns_mul_i32 s29, s20, {16*FS}\ns_add_u32 s28, s28, s29")
    if XH: A(f"s_add_u32 s28, s28, {XH}")
    A(f"v_and_b32 v3, 31, v1\nv_lshlrev_b32 v3, 2, v3\nv_xor_b32 v3, s30, v3\nv_mul_u32_u24 v9, {2*FS}, v9\nv_add3_u32 v3, v3, v9, s28")
    for n in range(1, 8): A(f"s_mov_b32 s{40+n}, {(4*(n>>1) + (n&1))*FS}")
    st.mark(A, 1)
    A("s_waitcnt vmcnt(0)\ns_barrier")
    st.mark(A, 2)
    def rd(c, ks):
        r = B + 32*(c & 1) + 4*ks
        base, k2 = ('v4', ks) if ks < 4 else ('v5', ks-4)
        return [f"ds_read_b64_tr_b16 v[{r+2*u}:{r+2*u+1}], {base} offset:{(16*k2+4*u)*576+32*c}" for u in range(2)]
    def outp(c):
        d = D + 16*(c & 1); ops = []
        for n in range(8):
            so = f"s{40+n}" if n else "0"
            ops.append([f"v_cvt_pk_bf16_f32 v{d+2*n}, v{d+2*n}, v{d+2*n+1}", f"buffer_store_dword v{d+2*n}, v3, s[12:15], {so} offen sc1"])
        ops[-1].append("v_add_u32 v3, 5376, v3")
        return ops
    PRE = 4
    seq = [(c, ks) for c in range(9) for ks in range(8)]
    for t in range(PRE):
        for s in rd(*seq[t]): A(s)
    pend = []
    for t, (c, ks) in enumerate(seq):
        A(f"s_waitcnt lgkmcnt({2*min(PRE-1, len(seq)-1-t)})")
        d = D + 16*(c & 1); r = B + 32*(c & 1) + 4*ks
        A(f"v_mfma_f32_32x32x16_bf16 v[{d}:{d+15}], v[{E+4*ks}:{E+4*ks+3}], v[{r}:{r+3}], " + ("0" if ks == 0 else f"v[{d}:{d+15}]"))
        if t + PRE < len(seq):
            for s in rd(*seq[t+PRE]): A(s)
        if ks == 3 and c > 0: pend = outp(c-1)
        for _ in range(2):
            if pend:
                for s in pend.pop(0): A(s)
    A("s_nop 11")
    for op in outp(8):
        for s in op: A(s)
    st.mark(A, 3)
    st.flush(A, 0, 's20', 'x')
    A("s_endpgm")
    A("L_k1_notx:")
    A("s_sub_u32 s22, s22, 21\ns_mul_i32 s23, s21, 10\ns_add_u32 s23, s23, s22")
    A("s_cmp_lt_u32 s22, 10\ns_cbranch_scc1 L_k1_w")
    A("s_mov_b32 s23, 80\ns_cmp_eq_u32 s21, 1\ns_cbranch_scc1 L_k1_tab\ns_cmp_lg_u32 s21, 0\ns_cbranch_scc1 L_k1_end")
    A("L_k1_w:")
    A("s_mul_i32 s24, s23, 7282\ns_lshr_b32 s24, s24, 16\ns_mul_i32 s25, s24, 9\ns_sub_u32 s25, s23, s25")
    A(f"s_mul_i32 s26, s24, {16*576}\ns_lshl_b32 s27, s25, 6\ns_add_u32 s26, s26, s27\ns_mul_i32 s27, s20, {8*82944}\ns_add_u32 s26, s26, s27")
    A("v_lshrrev_b32 v2, 2, v1\nv_mul_u32_u24 v2, 576, v2\nv_and_b32 v3, 3, v1\nv_lshl_add_u32 v2, v3, 4, v2\nv_add_u32 v2, s26, v2")
    A(f"s_mul_i32 s27, s20, {8*1088}\ns_mov_b32 m0, s27")
    A("s_waitcnt lgkmcnt(0)")
    srd(A, 16, 's6', 's7', 2571264)
    for i in range(8):
        A(f"buffer_load_dwordx4 v2, s[16:19], 0 offen {o['wpol']} lds")
        if i < 7: A("s_add_u32 m0, m0, 1088\nv_add_u32 v2, 82944, v2")
    srd(A, 12, 's8', 's9', WS_BYTES)
    row_phase(A, 's20')
    E, B, D, T = 16, 24, 56, 88
    A(f"s_mov_b32 s33, {fbits(-1.4426950408889634/64)}")
    gen_cos(A, E, 2, 'v6', 'v7', 8, scale='s33')
    A("v_bfe_u32 v8, v1, 2, 2\nv_lshrrev_b32 v9, 5, v1\nv_lshl_add_u32 v8, v9, 3, v8\nv_mul_u32_u24 v4, 1088, v8")
    A("v_bfe_u32 v10, v1, 4, 1\nv_lshl_add_u32 v4, v10, 5, v4\nv_and_b32 v8, 1, v1\nv_lshl_add_u32 v4, v8, 4, v4\nv_bfe_u32 v8, v1, 1, 1\nv_lshl_add_u32 v4, v8, 3, v4")
    A("s_lshl_b32 s27, s25, 1\nv_add_u32 v10, s27, v10\nv_cmp_le_u32 vcc, 9, v10\nv_mul_u32_u24 v10, 18432, v10")
    A(f"v_add_u32 v11, {(256 - 9*18432) & 0xffffffff}, v10\nv_cndmask_b32 v10, v10, v11, vcc")
    A(f"s_mul_i32 s28, s20, {16*WF}\ns_lshl_b32 s29, s24, 11\ns_add_u32 s28, s28, s29\ns_add_u32 s28, s28, {WH}")
    A(f"v_and_b32 v3, 15, v1\nv_lshl_add_u32 v3, v3, 4, v10\nv_mul_u32_u24 v9, {2*WF}, v9\nv_add3_u32 v3, v3, v9, s28")
    for n in range(1, 8): A(f"s_mov_b32 s{40+n}, {(4*(n>>1) + (n&1))*WF}")
    st.mark(A, 1)
    A("s_waitcnt vmcnt(0)\ns_barrier")
    st.mark(A, 2)
    def rdw(d):
        r = B + 8*(d & 3)
        return [f"ds_read_b64_tr_b16 v[{r+2*u}:{r+2*u+1}], v4 offset:{(16*(u>>1)+4*(u&1))*1088+64*d}" for u in range(4)]
    def cv(d):
        dd = D + 16*(d & 1); t = T + 32*((d >> 2) & 1) + (d & 3)
        return [f"v_cvt_pk_bf16_f32 v{t+4*n}, v{dd+2*n}, v{dd+2*n+1}" for n in range(8)]
    def stw(dq):
        t = T + 32*(dq & 1)
        return [f"buffer_store_dwordx4 v[{t+4*n}:{t+4*n+3}], v3, s[12:15], " + (f"s{40+n}" if n else "0") + f" offen offset:{512*dq} sc1" for n in range(8)]
    for d in range(3):
        for s in rdw(d): A(s)
    stq = []
    for d in range(16):
        dd = D + 16*(d & 1); r = B + 8*(d & 3)
        A(f"s_waitcnt lgkmcnt({4*min(2, 15-d)})")
        A(f"v_mfma_f32_32x32x16_bf16 v[{dd}:{dd+15}], v[{E}:{E+3}], v[{r}:{r+3}], 0")
        A(f"v_mfma_f32_32x32x16_bf16 v[{dd}:{dd+15}], v[{E+4}:{E+7}], v[{r+4}:{r+7}], v[{dd}:{dd+15}]")
        if d + 3 < 16:
            for s in rdw(d+3): A(s)
        else:
            A("s_nop 3")
        if d == 0: A("s_nop 7")
        if d > 0:
            for s in cv(d-1): A(s)
            if (d-1) & 3 == 3: stq += stw((d-1) >> 2)
        for _ in range(3):
            if stq: A(stq.pop(0))
    A("s_nop 3")
    for s in cv(15) + stq + stw(3): A(s)
    st.mark(A, 3)
    st.flush(A, 0, 's20', 'w')
    A("s_endpgm")
    A("L_k1_tab:")
    A("s_waitcnt lgkmcnt(0)")
    srd(A, 12, 's8', 's9', WS_BYTES)
    A("s_mul_i32 s24, s20, 6\ns_add_u32 s25, s24, 6")
    A("v_and_b32 v2, 31, v1\nv_add_u32 v2, 2, v2\nv_lshrrev_b32 v3, 5, v1\nv_lshlrev_b32 v3, 3, v3\nv_add_u32 v3, 1, v3\nv_lshlrev_b32 v16, 4, v1")
    A("L_k1_tabloop:")
    A("s_lshr_b32 s26, s24, 3\ns_lshl_b32 s26, s26, 5\ns_and_b32 s27, s24, 7\ns_lshl_b32 s27, s27, 4")
    A("v_add_u32 v4, s26, v2\nv_add_u32 v5, s27, v3")
    for kk in range(4):
        A(f"v_add_u32 v6, {2*kk}, v5\nv_mul_u32_u24 v6, v6, v4\nv_add_u32 v7, 64, v6\nv_and_b32 v6, 255, v6\nv_and_b32 v7, 255, v7")
        A(f"v_cvt_f32_u32 v6, v6\nv_cvt_f32_u32 v7, v7\nv_mul_f32 v6, {fbits(1/256)}, v6\nv_mul_f32 v7, {fbits(1/256)}, v7")
        A(f"v_cos_f32 v6, v6\nv_cos_f32 v7, v7\ns_nop 0\nv_cvt_pk_bf16_f32 v{8+kk}, v6, v7")
    A(f"s_lshl_b32 s26, s24, 10\ns_add_u32 s26, s26, {TB}")
    A("buffer_store_dwordx4 v[8:11], v16, s[12:15], s26 offen sc1")
    A("s_add_u32 s24, s24, 1\ns_cmp_lt_u32 s24, s25\ns_cbranch_scc1 L_k1_tabloop")
    A("L_k1_end:\ns_endpgm")

def k2(A, o):
    st = Stamps(o['stamps'])
    entry(A, 'gemm_kernel')
    st.mark(A, 0)
    A("s_cmp_ge_u32 s2, 256\ns_cbranch_scc1 L_k2_end")
    A("s_load_dwordx2 s[8:9], s[0:1], 32")
    A("v_and_b32 v1, 63, v0\nv_lshrrev_b32 v2, 6, v0\ns_and_b32 s21, s2, 7\nv_readfirstlane_b32 s20, v2")
    A("s_lshl_b32 s21, s21, 3\ns_lshr_b32 s22, s2, 5\ns_add_u32 s21, s21, s22\ns_bfe_u32 s22, s2, 0x20003")
    A(f"s_mul_i32 s24, s21, {FS}\ns_mul_i32 s25, s22, {XQ}\ns_add_u32 s24, s24, s25\ns_lshl_b32 s26, s20, 12\ns_add_u32 s24, s24, s26")
    if XH: A(f"s_add_u32 s24, s24, {XH}")
    A(f"s_mul_i32 s27, s21, {WF}\ns_add_u32 s27, s27, {WH}\ns_mul_i32 s28, s20, {2*18432}\ns_add_u32 s28, s28, s27")
    A("v_lshlrev_b32 v2, 4, v1")
    A("s_waitcnt lgkmcnt(0)")
    srd(A, 12, 's8', 's9', WS_BYTES)
    ACA, ACB, WR = 64, 160, 32
    W1 = ACB
    LW2, LW3 = 49152, 122880
    def xdma(g):
        ops = [[f"s_add_u32 m0, s26, {16384*g}", "s_nop 0", f"buffer_load_dwordx4 v2, s[12:15], s24 offen lds"]]
        for n in range(1, 4): ops.append([f"buffer_load_dwordx4 v2, s[12:15], s24 offen offset:{1024*n} lds"])
        ops[-1].append("s_add_u32 s24, s24, 16384")
        return ops
    def w1(ks):
        op = [f"buffer_load_dwordx4 v[{W1+4*ks}:{W1+4*ks+3}], v2, s[12:15], s28 offen offset:{1024*(ks&3)}"]
        if ks & 3 == 3: op.append("s_add_u32 s28, s28, 4096")
        if ks == 17: op.append("s_add_u32 s28, s28, 2048")
        return op
    def w2(ks):
        op = []
        if ks & 3 == 0: op += [f"s_add_u32 m0, s29, {1024*ks}", "s_nop 0"]
        op.append(f"buffer_load_dwordx4 v2, s[12:15], s28 offen offset:{1024*(ks&3)} lds")
        if ks & 3 == 3: op.append("s_add_u32 s28, s28, 4096")
        return op
    def w3(n):
        op = []
        if n & 3 == 0: op += [f"s_add_u32 m0, s30, {1024*n}", "s_nop 0"]
        op.append(f"buffer_load_dwordx4 v2, s[12:15], s31 offen offset:{1024*(n&3)} lds")
        if n == 3: op.append("s_add_u32 s31, s31, 4096")
        return op
    vm = []
    for g in range(3):
        vm += [(op, ('x', g)) for op in xdma(g)]
        vm += [(w1(ks), ('w1', ks)) for ks in range(6*g, 6*g+6)]
    vm += [(w2(ks), ('w2', ks)) for ks in range(18)]
    vm += [(w3(n), ('w3', n)) for n in range(5)]
    issued = []
    def issue(n):
        for _ in range(n):
            if vm:
                op, tag = vm.pop(0)
                for s in op: A(s)
                issued.append(tag)
    def wait_for(tag):
        idx = max(i for i, t in enumerate(issued) if t == tag)
        A(f"s_waitcnt vmcnt({min(63, len(issued)-1-idx)})")
    issue(o['k2pre'])
    A(f"s_mul_i32 s29, s20, 18432\ns_add_u32 s29, s29, {LW2}\ns_mul_i32 s30, s20, 5120\ns_add_u32 s31, s27, s30\ns_add_u32 s31, s31, {8*18432}\ns_add_u32 s30, s30, {LW3}")
    A("v_bfe_u32 v10, v1, 1, 4\nv_lshlrev_b32 v4, 7, v10\nv_and_b32 v11, 4, v10\nv_lshl_add_u32 v4, v11, 4, v4")
    A("v_and_b32 v11, 1, v1\nv_lshl_add_u32 v4, v11, 5, v4\nv_bfe_u32 v11, v10, 1, 1\nv_lshrrev_b32 v12, 5, v1\nv_xor_b32 v11, v11, v12\nv_lshl_add_u32 v4, v11, 4, v4")
    A("v_xor_b32 v5, 64, v4\ns_min_u32 s32, s20, 2\ns_lshl_b32 s33, s32, 11\nv_add_u32 v6, s33, v4\nv_add_u32 v7, s33, v5")
    A(f"v_add_u32 v8, s29, v2\nv_add_u32 v9, {LW3}, v2")
    A(f"s_mul_i32 s34, s22, {84*YB}\ns_lshl_b32 s35, s21, 7\ns_add_u32 s34, s34, s35\ns_add_u32 s34, s34, {YH}")
    A(f"v_and_b32 v13, 31, v1\nv_lshlrev_b32 v13, 2, v13\nv_mul_u32_u24 v11, {4*YB}, v12\nv_add3_u32 v13, v13, v11, s34")
    A(f"s_mul_i32 s35, s32, {32*YB}\ns_add_u32 s35, s35, {8*8192}\nv_add_u32 v17, s35, v13")
    A(f"s_lshl_b32 s35, s20, 14\nv_add_u32 v13, s35, v13\nv_add_u32 v14, {32*YB}, v13\nv_add_u32 v15, {64*YB}, v13")
    A("v_lshlrev_b32 v11, 31, v12\nv_or_b32 v16, v15, v11")
    A("s_cmp_eq_u32 s20, 2\ns_cselect_b32 s35, 0x80000000, 0\nv_and_b32 v11, s35, v11\nv_or_b32 v19, v17, v11\nv_or_b32 v20, s35, v17")
    for n in range(1, 16): A(f"s_mov_b32 s{40+n}, {(8*(n>>2) + (n&3))*YB}")
    A("s_mov_b32 s36, 0x8000")
    def xrd(ks, rt):
        a = 12*ks + 4*rt
        return f"ds_read_b128 a[{a}:{a+3}], v{4+(ks&1)} offset:{(ks>>1)*5376+2048*rt}"
    def mf(acc, ks, rt, w, first):
        a = 12*ks + 4*rt
        return f"v_mfma_f32_32x32x16_bf16 v[{acc}:{acc+15}], a[{a}:{a+3}], v[{w}:{w+3}], " + ("0" if first else f"v[{acc}:{acc+15}]")
    def rot(w): return [f"v_pk_add_u16 v{w+u}, v{w+u}, s36 op_sel:[1,0] op_sel_hi:[0,1]" for u in range(4)]
    def outs(acc, addr):
        ops = []
        for n in range(16):
            v = addr(n >> 2)
            if v is None: continue
            ops.append([f"v_cvt_pk_bf16_f32 v{acc+n}, v{acc+n}, v{acc+16+n}",
                        f"buffer_store_dword v{acc+n}, {v}, s[12:15], " + (f"s{40+n}" if n else "0") + " offen sc1"])
        return ops
    def pass_outs(acc):
        ops = []
        for rt in range(3):
            ops += outs(acc + 32*rt, lambda q, rt=rt: (f"v{13+rt}" if (rt < 2 or q < 2) else ("v16" if q == 2 else None)))
        return ops
    st.mark(A, 1)
    for g in range(3):
        wait_for(('x', g))
        A("s_barrier")
        if g == 0: st.mark(A, 2)
        for ks in range(6*g, 6*g+2):
            for rt in range(3): A(xrd(ks, rt))
        for ks in range(6*g, 6*g+6):
            w = W1 + 4*ks
            wait_for(('w1', ks))
            A(f"s_waitcnt lgkmcnt({3 if ks < 6*g+5 else 0})")
            for rt in range(3):
                A(mf(ACA + 32*rt, ks, rt, w, ks == 0))
                if ks + 2 < 6*g+6: A(xrd(ks+2, rt))
            for s in rot(w): A(s)
            A("s_nop 1")
            for rt in range(3):
                A(mf(ACA + 32*rt + 16, ks, rt, w, ks == 0))
                if rt < 2: issue(1)
    issue(100)
    st.mark(A, 3)
    def wrd(v, ks): return f"ds_read_b128 v[{WR+4*(ks&3)}:{WR+4*(ks&3)+3}], {v} offset:{1024*ks}"
    pend = pass_outs(ACA)
    def drain(n):
        for _ in range(n):
            if pend:
                for s in pend.pop(0): A(s)
                issued.append('st')
    wait_for(('w2', 2))
    for ks in range(3): A(wrd('v8', ks))
    for ks in range(18):
        w = WR + 4*(ks & 3)
        A(f"s_waitcnt lgkmcnt({min(2, 17-ks)})")
        for rt in range(3):
            A(mf(ACB + 32*rt, ks, rt, w, ks == 0))
            if ks >= 1 and rt < 2: drain(1)
        for s in rot(w): A(s)
        if ks + 3 < 18:
            wait_for(('w2', ks+3)); A(wrd('v8', ks+3))
        else:
            A("s_nop 1")
        for rt in range(3):
            A(mf(ACB + 32*rt + 16, ks, rt, w, ks == 0))
            if ks >= 1: drain(1)
    drain(100)
    st.mark(A, 4)
    A("v_add_u32 v13, 8192, v13\nv_add_u32 v14, 8192, v14\nv_add_u32 v15, 8192, v15\nv_add_u32 v16, 8192, v16")
    wait_for(('w3', 4))
    A("s_barrier")
    A("s_cmp_eq_u32 s20, 3\ns_cbranch_scc1 L_k2_w3")
    pend = pass_outs(ACB)
    XR = 48
    def x3(ks): return f"ds_read_b128 v[{XR+4*(ks&3)}:{XR+4*(ks&3)+3}], v{6+(ks&1)} offset:{(ks>>1)*5376}"
    for ks in range(3): A(wrd('v9', ks)); A(x3(ks))
    for ks in range(18):
        w = WR + 4*(ks & 3); xr = XR + 4*(ks & 3)
        A(f"s_waitcnt lgkmcnt({2*min(2, 17-ks)})")
        A(f"v_mfma_f32_32x32x16_bf16 v[{ACA}:{ACA+15}], v[{xr}:{xr+3}], v[{w}:{w+3}], " + ("0" if ks == 0 else f"v[{ACA}:{ACA+15}]"))
        for s in rot(w): A(s)
        if ks + 3 < 18: A(wrd('v9', ks+3)); A(x3(ks+3))
        else: A("s_nop 1")
        A(f"v_mfma_f32_32x32x16_bf16 v[{ACA+16}:{ACA+31}], v[{xr}:{xr+3}], v[{w}:{w+3}], " + ("0" if ks == 0 else f"v[{ACA+16}:{ACA+31}]"))
        drain(3 if ks < 8 else 2)
    drain(100)
    A("s_nop 7")
    for op in outs(ACA, lambda q: ("v17", "v17", "v19", "v20")[q]):
        for s in op: A(s)
    A("s_branch L_k2_fin")
    A("L_k2_w3:")
    A("s_nop 3")
    for op in pass_outs(ACB):
        for s in op: A(s)
    A("L_k2_fin:")
    st.mark(A, 5)
    st.flush(A, 1, 's20', 'g')
    A("L_k2_end:\ns_endpgm")

def k3(A, o):
    st = Stamps(o['stamps'])
    entry(A, NAME + '_kernel')
    st.mark(A, 0)
    A("s_cmp_ge_u32 s2, 252\ns_cbranch_scc1 L_k3_end")
    A("s_load_dwordx2 s[8:9], s[0:1], 32\ns_load_dwordx2 s[4:5], s[0:1], 16")
    A("v_and_b32 v1, 63, v0\nv_lshrrev_b32 v2, 6, v0\ns_and_b32 s21, s2, 7\nv_readfirstlane_b32 s20, v2")
    A("s_lshr_b32 s22, s2, 3\ns_mul_i32 s23, s21, 31\ns_min_u32 s21, s21, 4\ns_add_u32 s23, s23, s21\ns_add_u32 s23, s23, s22")
    A("s_lshl_b32 s23, s23, 2\ns_add_u32 s23, s23, s20")
    A("s_mul_i32 s24, s23, 21846\ns_lshr_b32 s24, s24, 16\ns_mul_i32 s25, s24, 3\ns_sub_u32 s25, s23, s25")
    A(f"s_mul_i32 s40, s23, {3*8192}\ns_add_u32 s40, s40, {YH}")
    for n in range(1, 6): A(f"s_add_u32 s{40+n}, s40, {4096*n}")
    A(f"s_mul_i32 s26, s20, 6144\ns_add_u32 s27, s26, {TB}\ns_mov_b32 m0, s26")
    A("v_lshlrev_b32 v2, 4, v1\nv_and_b32 v3, 31, v1\nv_lshrrev_b32 v4, 5, v1\nv_lshlrev_b32 v5, 2, v3\nv_lshl_add_u32 v5, v4, 9, v5")
    A("s_waitcnt lgkmcnt(0)")
    srd(A, 12, 's8', 's9', WS_BYTES)
    issued = []
    for n in range(6):
        if n == 4: A("s_add_u32 m0, m0, 4096\ns_add_u32 s27, s27, 4096")
        A(f"buffer_load_dwordx4 v2, s[12:15], s27 offen offset:{1024*(n&3)} lds"); issued.append('tab')
    Y, D = 64, 16
    lds = [(ct, ks, i) for ct in range(3) for ks in range(8) for i in range(4)]
    def issue(n):
        for _ in range(n):
            if lds:
                ct, ks, i = lds.pop(0)
                A(f"buffer_load_dword v{Y+32*ct+4*ks+i}, v5, s[12:15], s{40+2*ct+(ks>>2)} offen offset:{1024*(ks&3)+128*i} {o['ypol']}")
                issued.append((ct, ks))
    def wait_for(tag):
        idx = max(i for i, t in enumerate(issued) if t == tag)
        A(f"s_waitcnt vmcnt({min(63, len(issued)-1-idx)})")
    issue(56)
    A(f"s_lshr_b32 s28, s24, 1\ns_and_b32 s29, s24, 1\ns_cmp_ge_u32 s28, 84\ns_cselect_b32 s30, {XB}, 0\ns_cselect_b32 s31, 84, 0\ns_sub_u32 s28, s28, s31")
    A(f"s_add_u32 s16, s4, s30\ns_addc_u32 s17, s5, 0\ns_mov_b32 s18, {XB}\ns_mov_b32 s19, 0x00020000")
    A(f"s_mul_i32 s28, s28, {192*288}\ns_mul_i32 s29, s29, 288\ns_add_u32 s28, s28, s29\ns_mul_i32 s29, s25, 96\ns_add_u32 s28, s28, s29")
    A("v_mul_u32_u24 v6, 576, v3\nv_lshl_add_u32 v6, v4, 4, v6\nv_add_u32 v6, s28, v6")
    A(f"v_add_u32 v7, {32*576}, v6\nv_add_u32 v3, {64*576}, v6")
    st.mark(A, 1)
    wait_for('tab')
    A("s_barrier")
    for n in range(24):
        A(f"ds_read_b128 a[{4*n}:{4*n+3}], v2 offset:{1024*n}")
        if n == 11: A("s_waitcnt lgkmcnt(4)")
    def gate(d, ct, tt):
        g = d + 8; ops = []
        for u in range(8): ops += [f"v_exp_f32 v{d+u}, v{d+u}", f"v_exp_f32 v{g+u}, v{g+u}"]
        for u in range(0, 8, 2):
            ops += [f"v_pk_fma_f32 v[{d+u}:{d+u+1}], v[{d+u}:{d+u+1}], v[{d+u}:{d+u+1}], 1.0 op_sel_hi:[1,1,0]",
                    f"v_pk_add_f32 v[{g+u}:{g+u+1}], v[{g+u}:{g+u+1}], 1.0 op_sel_hi:[1,0]"]
        for u in range(8): ops += [f"v_rcp_f32 v{d+u}, v{d+u}", f"v_rcp_f32 v{g+u}, v{g+u}"]
        for u in range(0, 8, 2): ops.append(f"v_pk_fma_f32 v[{d+u}:{d+u+1}], v[{d+u}:{d+u+1}], 2.0, -1.0 op_sel_hi:[1,0,0]")
        for u in range(0, 8, 2): ops.append(f"v_pk_mul_f32 v[{d+u}:{d+u+1}], v[{d+u}:{d+u+1}], v[{g+u}:{g+u+1}]")
        t = 8 + 4*((3*ct+tt) & 1)
        for u in range(4): ops.append(f"v_cvt_pk_bf16_f32 v{t+u}, v{d+2*u}, v{d+2*u+1}")
        ops.append(f"buffer_store_dwordx4 v[{t}:{t+3}], " + ("v6", "v7", "v3")[tt] + f", s[16:19], 0 offen offset:{32*ct} {o['opol']}")
        return ops
    A("s_waitcnt lgkmcnt(0)")
    st.mark(A, 2)
    pend = []
    for ti in range(9):
        ct, tt = divmod(ti, 3)
        d = D + 16*(ti % 3)
        for ks in range(8):
            if tt == 0: wait_for((ct, ks))
            y = Y + 32*ct + 4*ks; b = 32*tt + 4*ks
            A(f"v_mfma_f32_32x32x16_bf16 v[{d}:{d+15}], v[{y}:{y+3}], a[{b}:{b+3}], " + ("0" if ks == 0 else f"v[{d}:{d+15}]"))
            if ti == 0: issue(4)
            if ti == 3 and ks < 2: issue(4)
            if ti == 2 and ks == 0: A("s_nop 3")
            for _ in range(7):
                if pend:
                    s = pend.pop(0); A(s)
                    if s.startswith('buffer_store'): issued.append('st')
        for s in pend:
            A(s)
            if s.startswith('buffer_store'): issued.append('st')
        pend = gate(D + 16*((ti-1) % 3), *divmod(ti-1, 3)) if ti >= 1 else []
        if ti == 0: st.mark(A, 3)
    for s in pend: A(s)
    for s in gate(D + 16*(8 % 3), 2, 2): A(s)
    st.mark(A, 4)
    st.flush(A, 2, 's20', 'o')
    A("L_k3_end:\ns_endpgm")

DEF = dict(stamps=False, xpol='nt', wpol='', ypol='', opol='', k2pre=20)
def gen(**kw):
    o = dict(DEF); o.update(kw)
    A = Asm()
    A("; @launch kernel=xform_kernel grid=(256,1,1) block=(256,1,1) lds=73728")
    A("; @launch kernel=gemm_kernel grid=(256,1,1) block=(256,1,1) lds=143360")
    A(f"; @launch kernel={NAME}_kernel grid=(252,1,1) block=(256,1,1) lds=24576")
    A('.amdgcn_target "amdgcn-amd-amdhsa--gfx950"\n.text')
    k1(A, o); k2(A, o); k3(A, o)
    A('.section .rodata,"a"')
    A.L.append(kd('xform_kernel', 160, 160))
    A.L.append(kd('gemm_kernel', 472, 256))
    A.L.append(kd(NAME + '_kernel', 256, 160))
    return A.text()

if __name__ == '__main__':
    for a in range(168): assert (a*1561) >> 16 == a//42
    for u in range(1008): assert (u*21846) >> 16 == u//3
    for u in range(81): assert (u*7282) >> 16 == u//9
    open(sys.argv[1] if len(sys.argv) > 1 else 't3/t3.s', 'w').write(gen())

GROUPS = [('k1x', 0, list(range(168)), [1, 2, 3]), ('k1w', 0, list(range(168, 249)), [1, 2, 3]),
          ('k2', 1, list(range(256)), [1, 2, 3, 4, 5]), ('k3', 2, list(range(252)), [1, 2, 3, 4])]
```

```python
import struct, sys
NAME = 'standalone__autoregressive_conv_wavernn__speech'

XP = 1152
FS = 168*XP
WF = 165888
YC = 16384
YA = 9*YC
XH, WH, YH, FL = 0, 13 << 20, 24 << 20, 50 << 20
F_X, F_W, F_Y = FL, FL + 32768, FL + 65536
STAMP = 64 << 20
WS_BYTES = 268435456
XB = 4608000
L_TAB, L_W, L_X = 73728, 98304, 114176
SPIN_MAX = 30000

def fbits(x): return "0x%08x" % struct.unpack('<I', struct.pack('<f', x))[0]

class Asm:
    def __init__(self): self.L = []
    def __call__(self, s):
        for t in s.split('\n'):
            t = t.strip()
            if t: self.L.append(t if (t.endswith(':') or t.startswith('.') or t.startswith(';')) else '    ' + t)
    def all(self, ops):
        for s in ops: self(s)
    def text(self): return "\n".join(self.L) + "\n"

def kd(name, vg, acc, sg=102):
    return f""".p2align 6
.amdhsa_kernel {name}
  .amdhsa_next_free_vgpr {vg}
  .amdhsa_next_free_sgpr {sg}
  .amdhsa_accum_offset {acc}
  .amdhsa_group_segment_fixed_size 0
  .amdhsa_kernarg_size 40
  .amdhsa_user_sgpr_count 2
  .amdhsa_user_sgpr_kernarg_segment_ptr 1
  .amdhsa_system_sgpr_workgroup_id_x 1
  .amdhsa_float_denorm_mode_32 3
.end_amdhsa_kernel"""

def srd(A, d, lo, hi, nbytes):
    A(f"s_mov_b32 s{d}, {lo}\ns_mov_b32 s{d+1}, {hi}\ns_mov_b32 s{d+2}, {nbytes}\ns_mov_b32 s{d+3}, 0x00020000")

class Stamps:
    def __init__(self, on): self.on = on; self.op = 's_memtime' if on == 'cyc' else 's_memrealtime'
    def mark(self, A, i):
        if self.on: A(f"{self.op} s[{70+2*i}:{71+2*i}]")
    def flush(self, A):
        if not self.on: return
        A(f"s_waitcnt vmcnt(0)\ns_barrier\n{self.op} s[100:101]\ns_waitcnt lgkmcnt(0)")
        A("s_cmp_lg_u32 s20, 0\ns_cbranch_scc1 L_end")
        A(f"s_lshl_b32 s68, s2, 6\ns_add_u32 s68, s68, {STAMP}\nv_mov_b32 v16, s68\ns_mov_b64 exec, 1")
        for i in range(16): A(f"v_mov_b32 v{i}, s{70+2*i}")
        for i in range(4): A(f"buffer_store_dwordx4 v[{4*i}:{4*i+3}], v16, s[12:15], 0 offen offset:{16*i}")

class VM:
    def __init__(self, A): self.A = A; self.q = []
    def op(self, s, tag): self.A(s); self.q.append(tag)
    def mark(self, tag): self.q.append(('mark', tag))
    def count(self, tag):
        idx = max(i for i, t in enumerate(self.q) if t == tag or t == ('mark', tag))
        return min(63, sum(1 for t in self.q[idx+1:] if not (isinstance(t, tuple) and t[0] == 'mark')))
    def wait(self, tag): self.A(f"s_waitcnt vmcnt({self.count(tag)})")

def spin(A, tag, load, vreg, want, sleep=0):
    A(f"s_mov_b32 s67, 0\nL_spin_{tag}:")
    A(f"v_cmp_gt_u32 vcc, {want}, {vreg}\ns_add_u32 s67, s67, 1\ns_cmp_ge_u32 s67, {SPIN_MAX}\ns_cbranch_scc1 L_go_{tag}\ns_cbranch_vccz L_go_{tag}")
    if sleep: A(f"s_sleep {sleep}")
    A(f"{load}\ns_waitcnt vmcnt(0)\ns_branch L_spin_{tag}\nL_go_{tag}:")

def gen_cos(A, dst, k0, k1, t0):
    for ks in range(k0, k1):
        for jj in range(8): A(f"v_fmamk_f32 v{t0+jj}, v6, {fbits(float(16*ks+jj))}, v7")
        for jj in range(8): A(f"v_fract_f32 v{t0+jj}, v{t0+jj}")
        for jj in range(8): A(f"v_cos_f32 v{t0+jj}, v{t0+jj}")
        for jj in range(4): A(f"v_cvt_pk_bf16_f32 v{dst+4*ks+jj}, v{t0+2*jj}, v{t0+2*jj+1}")

TAB = 160
def body(A, o):
    st = Stamps(o['stamps'])
    ld = o['ldpol']
    A(f".globl {NAME}_kernel\n.p2align 8\n.type {NAME}_kernel,@function\n{NAME}_kernel:")
    st.mark(A, 0)
    A("s_cmp_ge_u32 s2, 256\ns_cbranch_scc1 L_end")
    A("s_load_dwordx4 s[4:7], s[0:1], 0\ns_load_dwordx4 s[52:55], s[0:1], 16\ns_load_dwordx2 s[8:9], s[0:1], 32")
    A("v_and_b32 v1, 63, v0\nv_lshrrev_b32 v2, 6, v0\ns_and_b32 s21, s2, 7\nv_readfirstlane_b32 s20, v2\ns_lshr_b32 s22, s2, 3")
    A(f"s_getpc_b64 s[60:61]\nL_pc:\ns_add_u32 s60, s60, {NAME}_kernel-L_pc\ns_addc_u32 s61, s61, -1")
    A(f"s_lshl_b32 s62, s22, 10\nv_lshl_add_u32 v158, v0, 2, s62\nv_min_u32 v158, L_end-{NAME}_kernel, v158")
    A("v_mov_b32 v159, s61\nv_add_co_u32 v158, vcc, s60, v158\nv_lshlrev_b32 v2, 4, v1\ns_nop 0\nv_addc_co_u32 v159, vcc, 0, v159, vcc")
    A("global_load_dword v158, v[158:159], off")
    A("s_mul_i32 s23, s21, 21\ns_add_u32 s23, s23, s22\ns_sub_u32 s3, s2, 168\ns_lshl_b32 s28, s3, 1\ns_add_u32 s28, s28, 168")
    A("s_cmp_lt_u32 s3, 78\ns_cselect_b32 s29, 2, 0\ns_cmp_lt_u32 s22, 21\ns_cselect_b32 s28, s23, s28\ns_cselect_b32 s29, 1, s29\ns_cselect_b32 s63, 1, 0")
    A("v_lshrrev_b32 v8, 4, v1\nv_mul_u32_u24 v3, 576, v8\nv_and_b32 v8, 3, v1\nv_lshl_add_u32 v3, v8, 4, v3")
    A("v_bfe_u32 v8, v1, 2, 2\ns_lshl_b32 s3, s20, 3\nv_add_u32 v8, s3, v8\nv_mul_u32_u24 v8, 82944, v8\nv_add_u32 v3, v3, v8")
    A(f"s_lshl_b32 s30, s20, 11\ns_add_u32 s30, s30, {L_W}\ns_mov_b32 s31, s28\ns_add_u32 s32, s28, s29")
    A("s_waitcnt lgkmcnt(0)")
    srd(A, 24, 's6', 's7', 2571264)
    srd(A, 12, 's8', 's9', WS_BYTES)
    A("s_lshl_b32 s36, s21, 3\ns_lshr_b32 s37, s22, 2\ns_add_u32 s36, s36, s37\ns_and_b32 s37, s22, 3")
    A("s_cmp_lg_u32 s20, 3\ns_cbranch_scc1 L_noclr")
    A(f"s_lshl_b32 s3, s37, 6\ns_add_u32 s3, s3, s36\ns_lshl_b32 s3, s3, 7\ns_add_u32 s3, s3, {F_Y}\ns_lshl_b32 s33, s23, 7\ns_add_u32 s33, s33, {F_X-128}")
    A("s_cmp_eq_u32 s63, 1\ns_cselect_b32 s33, s33, 0x80000000\nv_mov_b32 v8, s3\nv_mov_b32 v9, s33\nv_cmp_gt_u32 vcc, 32, v1\nv_mov_b32 v10, 0\ns_nop 0\nv_cndmask_b32 v8, v9, v8, vcc\nv_lshl_add_u32 v8, v1, 2, v8")
    A("buffer_store_dword v10, v8, s[12:15], 0 offen sc1")
    A("L_noclr:")
    A("s_cmp_eq_u32 s29, 0\ns_cbranch_scc1 L_spare")
    A("L_wdma:")
    A("s_mul_i32 s33, s31, 7282\ns_lshr_b32 s33, s33, 16\ns_mul_i32 s34, s33, 1728\ns_lshl_b32 s35, s31, 6\ns_add_u32 s34, s34, s35")
    A(f"s_mov_b32 m0, s30\nv_add_u32 v8, s34, v3\nv_add_u32 v9, {4*82944-1024}, v8")
    A(f"buffer_load_dwordx4 v8, s[24:27], 0 offen {o['wpol']} lds\nbuffer_load_dwordx4 v9, s[24:27], 0 offen offset:1024 {o['wpol']} lds")
    A("s_add_u32 s30, s30, 8192\ns_add_u32 s31, s31, 1\ns_cmp_lt_u32 s31, s32\ns_cbranch_scc1 L_wdma")
    E, B, D, T, CT = 16, 48, 80, 112, 144
    A("s_cmp_eq_u32 s63, 0\ns_cbranch_scc1 L_nox1")
    A(f"s_cmp_ge_u32 s23, 84\ns_cselect_b32 s33, {XB}, 0\ns_cselect_b32 s34, 84, 0\ns_sub_u32 s34, s23, s34")
    A(f"s_add_u32 s16, s4, s33\ns_addc_u32 s17, s5, 0\ns_mov_b32 s18, {XB}\ns_mov_b32 s19, 0x00020000")
    A(f"s_mul_i32 s34, s34, {192*288}\ns_sub_u32 s34, s34, {64*288}\ns_mul_i32 s35, s20, {18*1024}\ns_add_u32 s34, s34, s35\ns_mov_b32 m0, s35\nv_add_u32 v10, s34, v2")
    def xd(i0, i1):
        for i in range(i0, i1):
            A(f"buffer_load_dwordx4 v10, s[16:19], 0 offen {o['xpol']} lds")
            if i < 17: A("s_add_u32 m0, m0, 1024\nv_add_u32 v10, 1024, v10")
    xd(0, o['xfirst'])
    A("L_nox1:")
    A("v_and_b32 v6, 30, v1\nv_or_b32 v6, 1, v6\ns_lshl_b32 s3, s20, 5\nv_add_u32 v6, s3, v6")
    A(f"v_cvt_f32_u32 v6, v6\nv_mul_f32 v6, {fbits(1/256)}, v6")
    A("v_lshrrev_b32 v9, 5, v1\nv_lshlrev_b32 v7, 3, v9\nv_cvt_f32_u32 v7, v7\nv_mul_f32 v7, v7, v6")
    A(f"v_and_b32 v8, 1, v1\nv_cvt_f32_u32 v8, v8\nv_fmac_f32 v7, {fbits(0.25)}, v8")
    gen_cos(A, E, 0, 2, CT)
    A(f"v_bfe_u32 v8, v1, 2, 2\nv_lshlrev_b32 v4, 6, v8\nv_lshl_add_u32 v4, v9, 11, v4\nv_bfe_u32 v11, v1, 4, 1\nv_lshl_add_u32 v4, v11, 5, v4")
    A(f"v_and_b32 v8, 1, v1\nv_lshl_add_u32 v4, v8, 4, v4\nv_bfe_u32 v8, v1, 1, 1\nv_lshl_add_u32 v4, v8, 3, v4\nv_add_u32 v4, {L_W}, v4")
    A(f"s_mul_i32 s3, s20, {16*WF}\ns_add_u32 s3, s3, {WH}\nv_and_b32 v5, 15, v1\nv_lshlrev_b32 v5, 4, v5\nv_mul_u32_u24 v8, {2*WF}, v9\nv_add3_u32 v5, v5, v8, s3")
    for n in range(1, 8): A(f"s_mov_b32 s{40+n}, {(4*(n>>1) + (n&1))*WF}")
    A("s_cmp_eq_u32 s63, 0\ns_cbranch_scc1 L_nox2")
    gen_cos(A, E, 2, 8, CT)
    xd(o['xfirst'], 18)
    A("s_waitcnt vmcnt(18)\ns_branch L_witems\nL_nox2:\ns_waitcnt vmcnt(0)")
    A("L_witems:")
    st.mark(A, 1)
    A("s_barrier")
    A("L_witem:")
    for d in range(4):
        A.all([f"ds_read_b64_tr_b16 v[{B+8*d+2*u}:{B+8*d+2*u+1}], v4 offset:{4096*(u>>1)+1024*(u&1)+256*d}" for u in range(4)])
        if d == 2: A("s_waitcnt lgkmcnt(8)")
    A("s_mul_i32 s33, s28, 7282\ns_lshr_b32 s33, s33, 16\ns_mul_i32 s34, s33, 9\ns_sub_u32 s34, s28, s34\ns_lshl_b32 s34, s34, 1\ns_lshl_b32 s33, s33, 8")
    A(f"v_add_u32 v8, s34, v11\nv_cmp_le_u32 vcc, 9, v8\nv_mul_u32_u24 v8, 18432, v8\nv_add_u32 v12, {(9216 - 9*18432) & 0xffffffff}, v8\nv_cndmask_b32 v8, v8, v12, vcc\nv_add3_u32 v12, v5, v8, s33")
    def wm(d):
        dd = D + 16*(d & 1); r = B + 8*d
        A(f"s_waitcnt lgkmcnt({12-4*d})")
        A(f"v_mfma_f32_32x32x16_bf16 v[{dd}:{dd+15}], v[{E}:{E+3}], v[{r}:{r+3}], 0")
        A(f"v_mfma_f32_32x32x16_bf16 v[{dd}:{dd+15}], v[{E+4}:{E+7}], v[{r+4}:{r+7}], v[{dd}:{dd+15}]")
    def wc(d):
        dd = D + 16*(d & 1)
        A.all([f"v_cvt_pk_bf16_f32 v{T+4*n+d}, v{dd+2*n}, v{dd+2*n+1}" for n in range(8)])
    wm(0); wm(1); A("s_nop 8"); wc(0); wm(2); wc(1); wm(3); A("s_nop 0"); wc(2); A("s_nop 2"); wc(3)
    wst = [f"buffer_store_dwordx4 v[{T+4*n}:{T+4*n+3}], v12, s[12:15], " + (f"s{40+n}" if n else "0") + " offen sc1" for n in range(8)]
    if o['wdefer']: A("s_cmp_eq_u32 s63, 1\ns_cbranch_scc1 L_table")
    A.all(wst)
    A("v_add_u32 v4, 8192, v4\ns_add_u32 s28, s28, 1\ns_cmp_lt_u32 s28, s32\ns_cbranch_scc1 L_witem")
    A("s_branch L_table")
    A("L_spare:\nv_mov_b32 v12, 0x80000000")
    A("s_cmp_lg_u32 s2, 255\ns_cbranch_scc1 L_table")
    A(f"v_lshlrev_b32 v8, 4, v0\nv_add_u32 v8, {F_W}, v8\nv_mov_b32 v9, 0\nv_mov_b32 v16, 0\nv_mov_b32 v17, 0\nv_mov_b32 v18, 0\nv_mov_b32 v19, 0")
    A("buffer_store_dwordx4 v[16:19], v8, s[12:15], 0 offen sc1")
    srd(A, 56, 's54', 's55', 256)
    A("s_waitcnt vmcnt(0)\ns_barrier\ns_cmp_lg_u32 s20, 0\ns_cbranch_scc1 L_table")
    A("v_mov_b32 v8, 1\ns_mov_b64 exec, 1\nbuffer_store_dword v8, v9, s[56:59], 0 offen sc1\ns_mov_b64 exec, -1")
    A("L_table:")
    st.mark(A, 2)
    srd(A, 56, 's54', 's55', 256)
    A(f"v_lshrrev_b32 v9, 5, v1\nv_lshlrev_b32 v8, 1, v9\ns_lshl_b32 s3, s20, 5\ns_add_u32 s3, s3, 1\nv_add_u32 v8, s3, v8\nv_cvt_f32_u32 v152, v8\nv_add_f32 v153, {fbits(16.0)}, v152")
    A(f"v_and_b32 v8, 31, v1\nv_add_u32 v8, 2, v8\nv_cvt_f32_u32 v154, v8\nv_mul_f32 v154, {fbits(1/256)}, v154")
    A(f"s_lshl_b32 s3, s20, 11\ns_add_u32 s3, s3, {L_TAB}\nv_add_u32 v8, s3, v2")
    S = -1.4426950408889634/64
    A(f"s_mov_b32 s33, {fbits(S)}\ns_mov_b32 s34, {fbits(-S)}")
    for n in range(6):
        tt, k1 = n >> 1, n & 1
        if k1 == 0:
            if tt: A(f"v_add_f32 v154, {fbits(0.125)}, v154")
            A("v_mul_f32 v155, 4.0, v154")
        A(f"v_mul_f32 v{CT}, v{152+k1}, v154")
        for kk in range(1, 4): A(f"v_add_f32 v{CT+2*kk}, v{CT+2*kk-2}, v155")
        for kk in range(4): A(f"v_fract_f32 v{CT+2*kk}, v{CT+2*kk}")
        for kk in range(4): A(f"v_sin_f32 v{CT+2*kk+1}, v{CT+2*kk}\nv_cos_f32 v{CT+2*kk}, v{CT+2*kk}")
        for kk in range(4): A(f"v_mul_f32 v{CT+2*kk+1}, s34, v{CT+2*kk+1}\nv_mul_f32 v{CT+2*kk}, s33, v{CT+2*kk}")
        t = D + 4*n
        for kk in range(4): A(f"v_cvt_pk_bf16_f32 v{t+kk}, v{CT+2*kk}, v{CT+2*kk+1}")
        A(f"ds_write_b128 v8, v[{t}:{t+3}] offset:{8192*tt+1024*k1}")
    A("v_mov_b32 v156, 0")
    rdy = "buffer_load_dword v157, v156, s[56:59], 0 offen sc1"
    A(rdy)
    A(f"v_and_b32 v13, 31, v1\nv_lshlrev_b32 v13, 7, v13\nv_add_u32 v13, {F_W}, v13")
    A(f"s_mul_i32 s3, s37, {42*128}\ns_add_u32 s3, s3, {F_X}\nv_min_u32 v14, 41, v1\nv_lshl_add_u32 v14, v14, 7, s3")
    A(f"v_add_u32 v15, {L_TAB}, v2")
    tabrd = [f"ds_read_b128 v[{TAB+4*n}:{TAB+4*n+3}], v15 offset:{1024*n}" for n in range(24)]
    def arrive_w(tag):
        A(f"s_cmp_lg_u32 s20, 0\ns_cbranch_scc1 L_arr_{tag}")
        if o['dbgmark']: st.mark(A, 13)
        spin(A, 'rdy' + tag, rdy, 'v157', 1)
        if o['dbgmark']: st.mark(A, 8)
        A(f"s_and_b32 s3, s2, 31\ns_lshl_b32 s3, s3, 7\ns_add_u32 s3, s3, {F_W}\nv_mov_b32 v156, s3\nv_mov_b32 v157, 1")
        A("s_mov_b64 exec, 1\nbuffer_atomic_add v157, v156, s[12:15], 0 offen sc1\ns_mov_b64 exec, -1")
        A(f"L_arr_{tag}:")
    wpoll = "buffer_load_dword v155, v13, s[12:15], 0 offen sc1"
    def wld(c, cti):
        a = (cti*9 + c)*4
        so, v = ('s64', f"v{(2, 3, 4, 5)[cti]}") if cti < 4 else ('s65', 'v2')
        ops = [f"buffer_load_dwordx4 a[{a}:{a+3}], {v}, s[12:15], {so} offen offset:{1024*(c&3)} {ld}"]
        if cti == 4 and c & 3 == 3: ops.append("s_add_u32 s64, s64, 4096\ns_add_u32 s65, s65, 4096")
        return ops
    def wsetup():
        A(f"s_mul_i32 s65, s36, {WF}\ns_add_u32 s65, s65, {WH}\ns_mul_i32 s64, s20, {2*18432}\ns_add_u32 s64, s64, s65")
        A(f"s_and_b32 s3, s20, 1\ns_mul_i32 s3, s3, 9216\ns_add_u32 s65, s65, s3\ns_add_u32 s65, s65, {8*18432}")
        A("v_add_u32 v3, 9216, v2\nv_add_u32 v4, 18432, v2\nv_add_u32 v5, 27648, v2")
    wseq = [(c, cti) for c in range(9) for cti in range(5)]
    NE = o['wearly']
    A("s_cmp_eq_u32 s63, 1\ns_cbranch_scc1 L_xrole")
    A("s_waitcnt vmcnt(0) lgkmcnt(0)\ns_barrier")
    arrive_w('w')
    for n, s in enumerate(tabrd):
        A(s)
        if n == 11: A("s_waitcnt lgkmcnt(2)")
    wsetup()
    A("s_cmp_lg_u32 s20, 0\ns_cbranch_scc1 L_go_w0\nv_mov_b32 v155, 0")
    spin(A, 'w0', wpoll, 'v155', 8, o['wsleep'])
    A("s_barrier\ns_branch L_go_w")
    A("L_xrole:")
    vm = VM(A)
    vm.q = ['x'] + ([] if o['wdefer'] else ['wst']*8) + ['rdy']
    A("v_bfe_u32 v8, v1, 2, 2\nv_lshl_add_u32 v8, v9, 3, v8\nv_mul_u32_u24 v4, 576, v8")
    A("v_bfe_u32 v8, v1, 1, 1\nv_mul_u32_u24 v8, 288, v8\nv_add_u32 v4, v4, v8")
    A("v_bfe_u32 v8, v1, 4, 1\nv_lshl_add_u32 v4, v8, 4, v4\nv_and_b32 v8, 1, v1\nv_lshl_add_u32 v4, v8, 3, v4\nv_add_u32 v5, 36864, v4")
    A("s_mul_i32 s33, s23, 9363\ns_lshr_b32 s33, s33, 16\ns_mul_i32 s33, s33, 7\ns_sub_u32 s33, s23, s33")
    A("s_and_b32 s34, s33, 4\ns_bfe_u32 s33, s33, 0x10001\ns_or_b32 s34, s34, s33\ns_lshl_b32 s34, s34, 4")
    A(f"s_mul_i32 s33, s23, {XP}\ns_mul_i32 s35, s20, {16*FS}\ns_add_u32 s33, s33, s35")
    if XH: A(f"s_add_u32 s33, s33, {XH}")
    A(f"v_and_b32 v3, 31, v1\nv_lshlrev_b32 v3, 2, v3\nv_xor_b32 v3, s34, v3\nv_mul_u32_u24 v8, {2*FS}, v9\nv_add3_u32 v3, v3, v8, s33")
    A(f"s_waitcnt vmcnt({vm.count('x')}) lgkmcnt(0)")
    if o['wdefer']:
        for q in wst: vm.op(q, 'wst')
    for n in range(1, 8): A(f"s_mov_b32 s{40+n}, {(4*(n>>1) + (n&1))*FS}")
    A("s_barrier")
    st.mark(A, 3)
    def rd(c, ks):
        r = B + 4*ks
        base, k2 = ('v4', ks) if ks < 4 else ('v5', ks-4)
        return [f"ds_read_b64_tr_b16 v[{r+2*u}:{r+2*u+1}], {base} offset:{(16*k2+4*u)*576+32*c}" for u in range(2)]
    def outp(c):
        d = D + 16*(c & 1)
        return [(f"v_cvt_pk_bf16_f32 v{d+2*n}, v{d+2*n}, v{d+2*n+1}",
                 f"buffer_store_dword v{d+2*n}, v3, s[12:15], " + (f"s{40+n}" if n else "0") + f" offen offset:{128*c} sc1") for n in range(8)]
    PRE = 4
    seq = [(c, ks) for c in range(9) for ks in range(8)]
    lq = []
    def lds(s, tag): A(s); lq.append(tag)
    for t in range(PRE):
        for s in rd(*seq[t]): lds(s, t)
    pend = []
    for t, (c, ks) in enumerate(seq):
        if ks == 0 and c == o['warr']:
            vm.wait('wst' if o['wdefer'] else 'rdy'); A("s_barrier"); arrive_w('x')
        if ks == 0 and c == o['warr'] + 1: A("s_barrier")
        if ks == 0 and c == o['wpollat']: vm.op(wpoll, 'wpoll')
        idx = max(i for i, q in enumerate(lq) if q == t)
        A(f"s_waitcnt lgkmcnt({len(lq)-1-idx})")
        d = D + 16*(c & 1); r = B + 4*ks
        A(f"v_mfma_f32_32x32x16_bf16 v[{d}:{d+15}], v[{E+4*ks}:{E+4*ks+3}], v[{r}:{r+3}], " + ("0" if ks == 0 else f"v[{d}:{d+15}]"))
        if t + PRE < len(seq):
            for s in rd(*seq[t+PRE]): lds(s, t+PRE)
        if ks < 3 and c >= 1 and not o['notab']: lds(tabrd[3*(c-1) + ks], 'tab')
        if ks == 3 and c > 0:
            pend = outp(c-1)
            if o['xthr'] is not None: A(f"s_waitcnt vmcnt({o['xthr']})")
        for _ in range(2):
            if pend:
                a, b = pend.pop(0); A(a); vm.op(b, 'xst')
    A("s_nop 11")
    for a, b in outp(8):
        A(a); vm.op(b, 'xst')
    st.mark(A, 4)
    wsetup()
    def xsignal(tag):
        A(f"s_barrier\ns_cmp_lg_u32 s20, 0\ns_cbranch_scc1 L_xs_{tag}")
        A(f"s_lshl_b32 s3, s23, 7\ns_add_u32 s3, s3, {F_X}\nv_mov_b32 v156, s3\nv_mov_b32 v157, 1")
        A(f"s_mov_b64 exec, 1\nbuffer_store_dword v157, v156, s[12:15], 0 offen sc1\ns_mov_b64 exec, -1\nL_xs_{tag}:")
    if o['warr'] > 8:
        A("s_waitcnt vmcnt(0)\ns_barrier"); arrive_w('x'); A("s_branch L_xlate")
    vm.wait('wpoll')
    A("v_cmp_gt_u32 vcc, 8, v155\ns_nop 4\ns_cbranch_vccnz L_xlate")
    for c, cti in wseq[:NE]: A.all(wld(c, cti))
    A(f"s_waitcnt vmcnt({NE})")
    xsignal('a')
    A("s_branch L_wrest")
    A("L_xlate:\ns_waitcnt vmcnt(0)")
    xsignal('b')
    A("L_wlate:")
    A(f"{wpoll}\ns_waitcnt vmcnt(0)")
    spin(A, 'w', wpoll, 'v155', 8, o['sleep'])
    for c, cti in wseq[:NE]: A.all(wld(c, cti))
    A("L_wrest:")
    st.mark(A, 5)
    for c, cti in wseq[NE:]: A.all(wld(c, cti))
    xpoll = "buffer_load_dword v155, v14, s[12:15], 0 offen sc1"
    A("s_cmp_lg_u32 s20, 0\ns_cbranch_scc1 L_nopoll")
    A(xpoll)
    A("L_nopoll:")
    A(f"s_mul_i32 s38, s36, {FS}\ns_mul_i32 s3, s37, {42*XP}\ns_add_u32 s38, s38, s3\ns_lshl_b32 s39, s20, 12\ns_add_u32 s38, s38, s39\ns_add_u32 s39, s39, {L_X}")
    if XH: A(f"s_add_u32 s38, s38, {XH}")
    A("s_cmp_eq_u32 s20, 3\ns_cselect_b32 s3, 16, 64\nv_cmp_gt_u32 vcc, s3, v1\nv_or_b32 v8, 0x80000000, v2\ns_nop 0\nv_cndmask_b32 v12, v8, v2, vcc")
    A(f"v_and_b32 v10, 7, v1\nv_mul_u32_u24 v4, {XP}, v10\nv_bfe_u32 v11, v1, 3, 1\nv_lshl_add_u32 v4, v11, 5, v4")
    A("v_lshrrev_b32 v10, 1, v10\nv_lshrrev_b32 v11, 4, v1\nv_xor_b32 v10, v10, v11")
    A("v_and_b32 v8, 1, v10\nv_lshl_add_u32 v4, v8, 4, v4\nv_lshrrev_b32 v8, 1, v10\nv_lshl_add_u32 v4, v8, 6, v4")
    A(f"s_lshr_b32 s33, s20, 1\ns_xor_b32 s34, s33, 1\ns_mul_i32 s3, s34, {7*XP}\ns_add_u32 s3, s3, {L_X}\nv_add_u32 v5, s3, v4")
    A(f"s_mul_i32 s3, s33, {7*XP}\ns_add_u32 s3, s3, {L_X}\nv_add_u32 v4, s3, v4")
    A(f"s_mul_i32 s35, s37, {42*YA}\ns_lshl_b32 s3, s36, 8\ns_add_u32 s35, s35, s3\ns_add_u32 s35, s35, {YH}")
    A(f"s_mul_i32 s33, s33, {7*YA}\ns_add_u32 s33, s33, s35\ns_mul_i32 s34, s34, {7*YA}\ns_add_u32 s34, s34, s35\ns_mul_i32 s3, s20, {2*YC}")
    A("s_add_u32 s34, s34, s3\ns_add_u32 s3, s33, s3\nv_lshl_add_u32 v6, v1, 2, s3\nv_lshl_add_u32 v7, v1, 2, s34")
    A(f"s_and_b32 s3, s20, 1\ns_lshl_b32 s3, s3, 6\ns_add_u32 s3, s3, s33\ns_add_u32 s3, s3, {8*YC}")
    A(f"v_and_b32 v8, 15, v1\nv_lshl_add_u32 v8, v8, 2, s3\nv_lshrrev_b32 v10, 5, v1\nv_lshl_add_u32 v8, v10, 7, v8")
    A(f"v_and_b32 v11, 1, v11\nv_mul_u32_u24 v10, {4*YA}, v11\nv_add_u32 v8, v8, v10\nv_lshlrev_b32 v11, 31, v11\nv_or_b32 v9, v8, v11")
    for n in range(1, 7): A(f"s_mov_b32 s{40+n}, {n*YA}")
    for n in range(7): A(f"s_mov_b32 s{(47, 48, 49, 50, 51, 30, 31)[n]}, {n*YA+YC}")
    A("s_mov_b32 s66, 0x80000000")
    A(f"s_lshl_b32 s3, s37, 6\ns_add_u32 s3, s3, s36\ns_lshl_b32 s3, s3, 7\ns_add_u32 s3, s3, {F_Y}\nv_mov_b32 v156, s3")
    A("s_mul_i32 s23, s21, 31\ns_min_u32 s3, s21, 4\ns_add_u32 s23, s23, s3\ns_add_u32 s23, s23, s22")
    A("s_mul_i32 s28, s23, 1041\ns_lshr_b32 s28, s28, 16\ns_min_u32 s28, s28, 3\ns_mul_i32 s3, s28, 63\ns_sub_u32 s29, s23, s3\ns_lshl_b32 s29, s29, 1\ns_lshr_b32 s3, s20, 1\ns_add_u32 s29, s29, s3")
    A(f"s_lshl_b32 s3, s28, 13\ns_add_u32 s3, s3, {F_Y}\nv_lshl_add_u32 v13, v1, 7, s3")
    A("s_waitcnt vmcnt(0)")
    A("s_cmp_lg_u32 s20, 0\ns_cbranch_scc1 L_go_x")
    spin(A, 'x', xpoll, 'v155', 1, o['sleep'])
    A("s_barrier")
    st.mark(A, 6)
    vm = VM(A)
    for g in range(3):
        A(f"s_add_u32 m0, s39, {16384*g}" + ("\ns_add_u32 s38, s38, 16384" if g else "\ns_nop 0"))
        for n in range(4):
            vm.op(f"buffer_load_dwordx4 {'v12' if (g, n) == (2, 3) else 'v2'}, s[12:15], s38 offen offset:{1024*n} {ld} lds", ('x', g))
    XR, XQ, ACA, ACB = 16, 32, 40, 80
    def acc(tb, cti, comp): return (ACB if tb else ACA) + 8*cti + 4*comp
    def xrd(u):
        it, tb, c = u // 18, (u // 9) & 1, u % 9
        r = XR + 4*(u & 3)
        return f"ds_read_b128 v[{r}:{r+3}], v{4+tb} offset:{it*14*XP + 128*c}"
    def store(v, addr, so): return f"buffer_store_dword v{v}, {addr}, s[12:15], {so} offen sc1"
    def outs(tb):
        ops = []; adr = f"v{6+tb}"
        for j in range(2):
            p0, p1 = acc(tb, 2*j, 0), acc(tb, 2*j+1, 0)
            for p in (p0, p1): ops += [f"v_cvt_pk_bf16_f32 v{p+r}, v{p+r}, v{p+4+r}" for r in range(4)]
            ops += [f"v_permlane16_swap_b32 v{p0+r}, v{p1+r}" for r in range(4)]
            for n in range(7):
                so = (f"s{40+n}" if n else "0") if j == 0 else f"s{(47, 48, 49, 50, 51, 30, 31)[n]}"
                ops.append(store((p0 if n < 4 else p1) + (n & 3), adr, so))
        ops.append(f"v_add_u32 {adr}, {14*YA}, {adr}")
        if tb == 0:
            p = acc(0, 4, 0)
            ops += [f"v_cvt_pk_bf16_f32 v{p+r}, v{p+r}, v{p+4+r}" for r in range(4)]
            if not o['noct8']: ops += [store(p+r, 'v8' if r < 3 else 'v9', f"s{40+r}" if r else "0") for r in range(4)]
            ops += [f"v_add_u32 v8, {14*YA}, v8", f"v_add_u32 v9, {14*YA}, v9"]
        return ops
    pend = []; ptag = [None]
    def drain(n):
        for _ in range(n):
            if pend:
                s = pend.pop(0)
                if s.startswith('buffer_store'): vm.op(s, ptag[0])
                else: A(s)
    def ysignal(stage):
        A(f"s_barrier\ns_cmp_lg_u32 s20, 0\ns_cbranch_scc1 L_ys_{stage}")
        A(f"v_mov_b32 v157, {stage}\ns_mov_b64 exec, 1\nbuffer_store_dword v157, v156, s[12:15], 0 offen sc1\ns_mov_b64 exec, -1\nL_ys_{stage}:")
    ypoll = "buffer_load_dword v155, v13, s[12:15], 0 offen sc1"
    vm.wait(('x', 0)); A("s_barrier")
    st.mark(A, 7)
    for u in range(3): A(xrd(u))
    for u in range(54):
        it, tb, c = u // 18, (u // 9) & 1, u % 9
        ncol = 4 if tb else 5
        if u == 12: vm.wait(('x', 2)); A("s_barrier")
        if it >= 1 and tb == 1 and c == o['ysig']:
            vm.wait(('y', 2*it-1)); ysignal(it)
        if u == o['ypollat']: vm.op(ypoll, 'ypoll')
        if c == 1 and u >= 9:
            pend.extend(outs(1-tb)); ptag[0] = ('y', u//9 - 1)
            if o['ythr'] is not None and u > 18: A(f"s_waitcnt vmcnt({o['ythr']})")
        A(f"s_waitcnt lgkmcnt({min(2, 53-u)})")
        x = XR + 4*(u & 3)
        for comp in range(2):
            for cti in range(ncol):
                d = acc(tb, cti, comp); a = (cti*9 + c)*4; xs = XQ if comp else x
                A(f"v_mfma_f32_16x16x32_bf16 v[{d}:{d+3}], v[{xs}:{xs+3}], a[{a}:{a+3}], " + ("0" if c == 0 else f"v[{d}:{d+3}]"))
                if comp == 0 and cti < 2:
                    for q in (2*cti, 2*cti+1): A(f"v_pk_add_u16 v{XQ+q}, v{x+q}, s66 op_sel:[1,0] op_sel_hi:[0,1]")
                elif comp == 0 and cti == 2:
                    if u + 3 < 54: A(xrd(u+3))
                    drain(1)
                else:
                    drain(2 if cti & 1 else 1)
        if c == 8: drain(100)
        if u == 17 and not o['dbgmark']: st.mark(A, 8)
    st.mark(A, 9)
    A(f"s_and_b32 s32, s20, 1\ns_mul_i32 s38, s28, {42*YA}\ns_mul_i32 s3, s29, {YC}\ns_add_u32 s38, s38, s3\ns_lshl_b32 s3, s32, 7\ns_add_u32 s38, s38, s3\ns_add_u32 s38, s38, {YH}")
    A("s_mul_i32 s39, s20, 24576\nv_lshrrev_b32 v3, 3, v1\nv_lshl_add_u32 v5, v3, 7, v2")
    pend.extend(outs(1)); ptag[0] = ('y', 5); drain(100)
    A("s_cmp_ge_u32 s2, 252\ns_cbranch_scc0 L_p3")
    A("s_waitcnt vmcnt(0)"); A("s_barrier\ns_cmp_lg_u32 s20, 0\ns_cbranch_scc1 L_fin")
    A("v_mov_b32 v157, 3\ns_mov_b64 exec, 1\nbuffer_store_dword v157, v156, s[12:15], 0 offen sc1\ns_mov_b64 exec, -1\ns_branch L_fin")
    A("L_p3:")
    yq = [(i, ks) for i in range(3) for ks in range(8)]
    def issue(n):
        for _ in range(n):
            i, ks = yq.pop(0)
            if ks & 3 == 0: A(f"s_add_u32 m0, s39, {8192*i + 1024*ks}")
            if i or ks: A(f"s_add_u32 s38, s38, {1024 if ks & 3 else (5120 if ks else 14*YA - 11264)}")
            else: A("s_nop 0")
            vm.op(f"buffer_load_dwordx4 v5, s[12:15], s38 offen offset:{1024*(ks&3)} {ld} lds", ('yi', i, ks))
    vm.wait('ypoll')
    spin(A, 'y1', ypoll, 'v155', 1, o['sleep'])
    vm.op(ypoll, 'ypoll')
    issue(8)
    vm.wait(('y', 5)); ysignal(3)
    vm.wait('ypoll')
    st.mark(A, 10)
    spin(A, 'y2', ypoll, 'v155', 2, o['sleep'])
    issue(4)
    A("s_mul_i32 s33, s29, 7282\ns_lshr_b32 s33, s33, 16\ns_mul_i32 s3, s33, 9\ns_sub_u32 s34, s29, s3")
    A(f"s_lshr_b32 s3, s28, 1\ns_mul_i32 s3, s3, {XB}\ns_add_u32 s16, s52, s3\ns_addc_u32 s17, s53, 0\ns_mov_b32 s18, {XB}\ns_mov_b32 s19, 0x00020000")
    A(f"s_and_b32 s3, s28, 1\ns_mul_i32 s3, s3, 42\ns_add_u32 s33, s33, s3\ns_mul_i32 s33, s33, {192*288}\ns_mul_i32 s3, s32, 288\ns_add_u32 s33, s33, s3\ns_lshl_b32 s3, s34, 5\ns_add_u32 s33, s33, s3")
    A("v_and_b32 v3, 31, v1\nv_lshrrev_b32 v4, 5, v1\nv_mul_u32_u24 v6, 576, v3\nv_lshl_add_u32 v6, v4, 4, v6\nv_add_u32 v6, s33, v6")
    A("v_lshl_add_u32 v4, v1, 2, s39\ns_mov_b32 s33, 0x7fffffff")
    Y, D, T, O = 16, 80, 128, 136
    def yrd(i, ks):
        y = Y + 32*(i & 1) + 4*ks; o0 = 32*i + 4*ks
        return [f"ds_read2st64_b32 v[{y+2*u}:{y+2*u+1}], v4 offset0:{o0+2*u} offset1:{o0+2*u+1}" for u in range(2)]
    def gate(ti):
        d = D + 16*(ti % 3); g = d + 8; ops = []
        for u in range(8): ops += [f"v_exp_f32 v{T+u}, -abs(v{d+u})", f"v_exp_f32 v{g+u}, v{g+u}"]
        for u in range(8): ops.append(f"v_fma_f32 v{T+u}, v{T+u}, v{T+u}, 1.0")
        for u in range(8): ops.append(f"v_fma_f32 v{g+u}, v{g+u}, v{T+u}, v{T+u}")
        for u in range(8): ops += [f"v_rcp_f32 v{g+u}, v{g+u}", f"v_sub_f32 v{T+u}, 2.0, v{T+u}"]
        for u in range(8): ops.append(f"v_bfi_b32 v{d+u}, s33, v{T+u}, v{d+u}")
        for u in range(8): ops.append(f"v_mul_f32 v{d+u}, v{d+u}, v{g+u}")
        t = O + 4*(ti & 1)
        for u in range(4): ops.append(f"v_cvt_pk_bf16_f32 v{t+u}, -v{d+2*u}, -v{d+2*u+1}")
        ops.append(f"buffer_store_dwordx4 v[{t}:{t+3}], v6, s[16:19], 0 offen {o['opol']}")
        ops.append(f"v_add_u32 v6, {32*576 if ti % 3 < 2 else 14*192*288 - 64*576}, v6")
        return ops
    cost = lambda s: 8 if (s.startswith('v_exp') or s.startswith('v_rcp')) else 4
    def emit(s):
        if s.startswith('buffer_store'): vm.op(s, 'ost')
        else: A(s)
    def mfmas(ti, fill):
        i, tt = divmod(ti, 3); d = D + 16*(ti % 3)
        tot = sum(cost(s) for s in fill); done = 0
        for ks in range(8):
            y = Y + 32*(i & 1) + 4*ks; b = TAB + 32*tt + 4*ks
            A(f"v_mfma_f32_32x32x16_bf16 v[{d}:{d+15}], v[{y}:{y+3}], v[{b}:{b+3}], " + ("0" if ks == 0 else f"v[{d}:{d+15}]"))
            while fill and done < tot*(ks+1)/8:
                s = fill.pop(0); done += cost(s); emit(s)
    def fetch(i):
        for ks in range(8):
            if ks % 4 == 0: vm.wait(('yi', i, ks+3))
            A.all(yrd(i, ks))
            if ks == 3: A("s_waitcnt lgkmcnt(4)")
    for i in range(3):
        fetch(i)
        if i == 0:
            st.mark(A, 11)
            vm.op(ypoll, 'ypoll'); issue(4)
        tailg = gate(3*i-1) if i else []
        for s in tailg[:8]: emit(s)
        A("s_waitcnt lgkmcnt(0)")
        mfmas(3*i, tailg[8:])
        mfmas(3*i+1, ["s_nop 7", "s_nop 3"] + gate(3*i))
        if i == 0:
            vm.wait('ypoll'); spin(A, 'y3', ypoll, 'v155', 3, o['sleep']); issue(8)
            st.mark(A, 12)
        mfmas(3*i+2, ["s_nop 7", "s_nop 3"] + gate(3*i+1))
        if i == 1 and not o['dbgmark']: st.mark(A, 13)
    A("s_nop 11")
    for s in gate(8): emit(s)
    A("L_fin:")
    st.mark(A, 14)
    st.flush(A)
    A("L_end:\ns_endpgm")

DEF = dict(notab=False, wdefer=True, xthr=None, ythr=None, noct8=False, dbgmark=False, wsleep=16, sleep=2, stamps=False, xpol='nt', wpol='nt', ldpol='sc1', opol='', xfirst=9, warr=3, wpollat=7, wearly=12, ysig=1, ypollat=50)
def gen(**kw):
    o = dict(DEF); o.update(kw)
    A = Asm()
    A("; negacyclic DFT per parity sequence, 96 outputs per block) in one launch of co-resident workgroups:")
    A("; @launch grid=(256,1,1) block=(256,1,1) lds=163840")
    A('.amdgcn_target "amdgcn-amd-amdhsa--gfx950"\n.text')
    body(A, o)
    A('.section .rodata,"a"')
    A.L.append(kd(NAME + '_kernel', 440, 256))
    return A.text()

if __name__ == '__main__':
    for a in range(168): assert (a*9363) >> 16 == a//7
    for u in range(324): assert (u*7282) >> 16 == u//9
    for u in range(252): assert (u*1041) >> 16 == u//63
    open(sys.argv[1] if len(sys.argv) > 1 else 't3/f.s', 'w').write(gen())

GROUPS = [('x', list(range(168))), ('w', list(range(168, 246))), ('c', [255])]
```

```python
import sys
from gen_f import Asm, VM, kd, srd, fbits, gen_cos, NAME

XP = 1152
FS = 168*XP
WF = 165888
YC = 16384
YA = 9*YC
XH, WH, YH, FL = 0, 13 << 20, 24 << 20, 50 << 20
STAMP = 64 << 20
WS_BYTES = 268435456
XB = 4608000
L_TAB, L_W, L_X, L_O = 73728, 98304, 114176, 98304
SPIN_MAX = 30000
TAB = 160

class Stamps:
    def __init__(self, on): self.on = on; self.op = 's_memtime' if on == 'cyc' else 's_memrealtime'; self.used = []; self.once = False
    def mark(self, A, i):
        if self.on and not (self.once and i in self.used):
            A(f"{self.op} s[{70+2*i}:{71+2*i}]")
            if i not in self.used: self.used.append(i)
    def flush(self, A, end, last):
        if not self.on: return
        A("s_waitcnt vmcnt(0)\ns_barrier"); self.mark(A, last); A("s_waitcnt lgkmcnt(0)")
        A(f"s_cmp_lg_u32 s20, 0\ns_cbranch_scc1 {end}")
        A(f"s_lshl_b32 s68, s2, 6\ns_add_u32 s68, s68, {STAMP}\nv_mov_b32 v16, s68\ns_mov_b64 exec, 1")
        for i in self.used: A(f"v_mov_b32 v{i}, s{70+2*i}")
        for i in self.used: A(f"buffer_store_dword v{i}, v16, s[12:15], 0 offen offset:{4*i}")
        self.used = []

def spin(A, tag, load, vreg, want, sleep=0):
    A(f"s_mov_b32 s67, 0\nL_spin_{tag}:")
    A((f"v_cmp_gt_u32 vcc, {want}, {vreg}" if want == 1 else f"v_cmp_ne_u32 vcc, {want}, {vreg}") + f"\ns_add_u32 s67, s67, 1\ns_cmp_ge_u32 s67, {SPIN_MAX}\ns_cbranch_scc1 L_go_{tag}\ns_cbranch_vccz L_go_{tag}")
    if sleep: A(f"s_sleep {sleep}")
    A(f"{load}\ns_waitcnt vmcnt(0)\ns_branch L_spin_{tag}\nL_go_{tag}:")

class G:
    def __init__(self, o):
        self.o = o; self.A = Asm(); self.st = Stamps(o['stamps']); self.st.once = o['dbg']
        self.f1 = o['fuse'] in ('12', '123'); self.f2 = o['fuse'] in ('23', '123')
        self.ld = o['ldpol']
        self.rdy = "buffer_load_dword v157, v156, s[56:59], 0 offen sc1"
        self.poll = "buffer_load_dword v155, v13, s[12:15], 0 offen sc1"
        self.tabrd = [f"ds_read_b128 v[{TAB+4*n}:{TAB+4*n+3}], v15 offset:{1024*n}" for n in range(24)]

    def entry(self, name, nwg, lo, hi, mark):
        A = self.A
        A(f".globl {name}\n.p2align 8\n.type {name},@function\n{name}:")
        if mark is not None: self.st.mark(A, mark)
        A(f"s_cmp_ge_u32 s2, {nwg}\ns_cbranch_scc1 L_end_{name}")
        A("s_load_dwordx4 s[4:7], s[0:1], 0\ns_load_dwordx4 s[52:55], s[0:1], 16\ns_load_dwordx2 s[8:9], s[0:1], 32")
        A("v_and_b32 v1, 63, v0\nv_lshrrev_b32 v2, 6, v0\ns_and_b32 s21, s2, 7\nv_readfirstlane_b32 s20, v2\ns_lshr_b32 s22, s2, 3")
        A(f"s_getpc_b64 s[60:61]\nL_pc_{name}:\ns_add_u32 s60, s60, {lo}-L_pc_{name}\ns_addc_u32 s61, s61, -1")
        A(f"s_lshl_b32 s62, s22, 10\nv_lshl_add_u32 v158, v0, 2, s62\nv_min_u32 v158, {hi}-{lo}, v158")
        A("v_mov_b32 v159, s61\nv_add_co_u32 v158, vcc, s60, v158\nv_lshlrev_b32 v2, 4, v1\ns_nop 0\nv_addc_co_u32 v159, vcc, 0, v159, vcc")
        A("global_load_dword v158, v[158:159], off")
        A("s_lshl_b32 s36, s21, 3\ns_lshr_b32 s37, s22, 2\ns_add_u32 s36, s36, s37\ns_and_b32 s37, s22, 3")

    def leave(self, name, last):
        self.st.flush(self.A, f"L_end_{name}", last)
        self.A(f"L_end_{name}:\ns_endpgm")

    def pick_tag(self, skip):
        A = self.A
        srd(A, 56, 's54', 's55', 256)
        A(f"s_and_b32 s33, s2, 3\ns_lshl_b32 s3, s33, 15\ns_add_u32 s3, s3, {FL}\nv_lshl_add_u32 v8, v0, 7, s3\nv_mov_b32 v9, 0")
        A("buffer_load_dword v20, v8, s[12:15], 0 offen sc1\nbuffer_load_dword v24, v9, s[56:59], 0 offen sc1")
        A("v_mov_b32 v16, 0\nv_mov_b32 v17, 0\nv_lshlrev_b32 v10, 3, v0\nv_mov_b32 v25, -1")
        A("ds_write_b64 v10, v[16:17]\nds_write_b32 v9, v25 offset:2048")
        A("s_waitcnt vmcnt(0) lgkmcnt(0)\ns_barrier")
        A("v_and_b32 v20, 511, v20\nv_lshlrev_b32 v20, 2, v20\nds_write_b32 v20, v25")
        A("s_waitcnt lgkmcnt(0)\ns_barrier\nds_read_b64 v[16:17], v10\nv_lshlrev_b32 v11, 1, v0\ns_waitcnt lgkmcnt(0)")
        A("v_or_b32 v16, v16, v11\nv_or3_b32 v17, v17, v11, 1\nv_min_u32 v16, v16, v17")
        A("ds_min_u32 v9, v16 offset:2048\ns_waitcnt lgkmcnt(0)\ns_barrier")
        A(f"s_cmp_lg_u32 s20, 0\ns_cbranch_scc1 {skip}")
        A("ds_read_b32 v8, v9 offset:2048\ns_lshl_b32 s33, s33, 2\nv_mov_b32 v10, s33\ns_waitcnt lgkmcnt(0)\nv_or_b32 v8, 0x80000000, v8")
        A("s_mov_b64 exec, 1\nbuffer_store_dword v8, v10, s[56:59], 0 offen sc1\ns_mov_b64 exec, -1")

    def signal(self, val, tag):
        A = self.A
        A(f"s_barrier\ns_cmp_lg_u32 s20, 0\ns_cbranch_scc1 L_sg_{tag}")
        A(f"v_mov_b32 v157, s{24+val}\ns_mov_b32 s3, {32768*val}\ns_mov_b64 exec, 1\nbuffer_store_dword v157, v156, s[12:15], s3 offen sc1\ns_mov_b64 exec, -1\nL_sg_{tag}:")

    def flag_addr(self):
        self.A(f"s_lshl_b32 s3, s37, 6\ns_add_u32 s3, s3, s36\ns_lshl_b32 s3, s3, 7\ns_add_u32 s3, s3, {FL}\nv_mov_b32 v156, s3")

    def table(self, base, D, CT=144):
        A = self.A
        A(f"v_lshrrev_b32 v9, 5, v1\nv_lshlrev_b32 v8, 1, v9\ns_lshl_b32 s3, s20, 5\ns_add_u32 s3, s3, 1\nv_add_u32 v8, s3, v8\nv_cvt_f32_u32 v152, v8\nv_add_f32 v153, {fbits(16.0)}, v152")
        A(f"v_and_b32 v8, 31, v1\nv_add_u32 v8, 2, v8\nv_cvt_f32_u32 v154, v8\nv_mul_f32 v154, {fbits(1/256)}, v154")
        A(f"s_lshl_b32 s3, s20, 11\ns_add_u32 s3, s3, {base}\nv_add_u32 v8, s3, v2\nv_add_u32 v15, {base}, v2")
        S = -1.4426950408889634/64
        A(f"s_mov_b32 s33, {fbits(S)}\ns_mov_b32 s34, {fbits(-S)}")
        for n in range(6):
            tt, k1 = n >> 1, n & 1
            if k1 == 0:
                if tt: A(f"v_add_f32 v154, {fbits(0.125)}, v154")
                A("v_mul_f32 v155, 4.0, v154")
            A(f"v_mul_f32 v{CT}, v{152+k1}, v154")
            for kk in range(1, 4): A(f"v_add_f32 v{CT+2*kk}, v{CT+2*kk-2}, v155")
            for kk in range(4): A(f"v_fract_f32 v{CT+2*kk}, v{CT+2*kk}")
            for kk in range(4): A(f"v_sin_f32 v{CT+2*kk+1}, v{CT+2*kk}\nv_cos_f32 v{CT+2*kk}, v{CT+2*kk}")
            for kk in range(4): A(f"v_mul_f32 v{CT+2*kk+1}, s34, v{CT+2*kk+1}\nv_mul_f32 v{CT+2*kk}, s33, v{CT+2*kk}")
            t = D + 4*n
            for kk in range(4): A(f"v_cvt_pk_bf16_f32 v{t+kk}, v{CT+2*kk}, v{CT+2*kk+1}")
            A(f"ds_write_b128 v8, v[{t}:{t+3}] offset:{8192*tt+1024*k1}")

    def tab_reads(self):
        for n, s in enumerate(self.tabrd):
            self.A(s)
            if n == 11: self.A("s_waitcnt lgkmcnt(2)")
        self.A("s_waitcnt lgkmcnt(8)")

    def phase1(self):
        A, o, st = self.A, self.o, self.st
        tab_here = self.f1 and self.f2
        nx, nw = o['nx'], o['nw']
        first = 168*nx; cnt = -(-(324 - first)//nw)
        A(f"s_mul_i32 s23, s21, 21\ns_add_u32 s23, s23, s22\ns_sub_u32 s3, s2, 168\ns_mul_i32 s28, s3, {nw}\ns_add_u32 s28, s28, {first}")
        A(f"s_cmp_lt_u32 s3, {cnt}\ns_cselect_b32 s29, {nw}, 0\ns_cmp_lt_u32 s22, 21\ns_cselect_b32 s28, s23, s28\ns_cselect_b32 s29, {nx}, s29\ns_cselect_b32 s63, 1, 0")
        A("v_lshrrev_b32 v8, 4, v1\nv_mul_u32_u24 v3, 576, v8\nv_and_b32 v8, 3, v1\nv_lshl_add_u32 v3, v8, 4, v3")
        A("v_bfe_u32 v8, v1, 2, 2\ns_lshl_b32 s3, s20, 3\nv_add_u32 v8, s3, v8\nv_mul_u32_u24 v8, 82944, v8\nv_add_u32 v3, v3, v8")
        A(f"s_lshl_b32 s30, s20, 11\ns_add_u32 s30, s30, {L_W}\ns_mov_b32 s31, s28\ns_add_u32 s32, s28, s29\nv_mov_b32 v12, 0x80000000")
        if o['dbg']: st.mark(A, 10)
        A("s_waitcnt lgkmcnt(0)")
        if o['dbg']: st.mark(A, 11)
        srd(A, 24, 's6', 's7', 2571264)
        srd(A, 12, 's8', 's9', WS_BYTES)
        A("s_cmp_eq_u32 s29, 0\ns_cbranch_scc1 L_nowdma")
        A("L_wdma:")
        A("s_mul_i32 s33, s31, 7282\ns_lshr_b32 s33, s33, 16\ns_mul_i32 s34, s33, 1728\ns_lshl_b32 s35, s31, 6\ns_add_u32 s34, s34, s35")
        A(f"s_mov_b32 m0, s30\nv_add_u32 v8, s34, v3\nv_add_u32 v9, {4*82944-1024}, v8")
        A(f"buffer_load_dwordx4 v8, s[24:27], 0 offen {o['wpol']} lds\nbuffer_load_dwordx4 v9, s[24:27], 0 offen offset:1024 {o['wpol']} lds")
        A("s_add_u32 s30, s30, 8192\ns_add_u32 s31, s31, 1\ns_cmp_lt_u32 s31, s32\ns_cbranch_scc1 L_wdma")
        A("L_nowdma:")
        E, B, D, T, CT = 16, 48, 80, 112, 144
        A("s_cmp_eq_u32 s63, 0\ns_cbranch_scc1 L_nox1")
        A(f"s_cmp_ge_u32 s23, 84\ns_cselect_b32 s33, {XB}, 0\ns_cselect_b32 s34, 84, 0\ns_sub_u32 s34, s23, s34")
        A(f"s_add_u32 s16, s4, s33\ns_addc_u32 s17, s5, 0\ns_mov_b32 s18, {XB}\ns_mov_b32 s19, 0x00020000")
        A(f"s_mul_i32 s34, s34, {192*288}\ns_sub_u32 s34, s34, {64*288}\ns_mul_i32 s35, s20, {18*1024}\ns_add_u32 s34, s34, s35\ns_mov_b32 m0, s35\nv_add_u32 v10, s34, v2")
        def xd(i0, i1):
            for i in range(i0, i1):
                A(f"buffer_load_dwordx4 v10, s[16:19], 0 offen {o['xpol']} lds")
                if i < 17: A("s_add_u32 m0, m0, 1024\nv_add_u32 v10, 1024, v10")
        if o['dbg']: st.mark(A, 12)
        xd(0, o['xfirst'])
        if o['dbg']: st.mark(A, 13)
        A("s_branch L_rows\nL_nox1:")
        if self.f1:
            A("s_cmp_lt_u32 s2, 252\ns_cbranch_scc1 L_rows")
            self.pick_tag('L_rows')
        A("L_rows:")
        A("v_and_b32 v6, 30, v1\nv_or_b32 v6, 1, v6\ns_lshl_b32 s3, s20, 5\nv_add_u32 v6, s3, v6")
        A(f"v_cvt_f32_u32 v6, v6\nv_mul_f32 v6, {fbits(1/256)}, v6")
        A("v_lshrrev_b32 v9, 5, v1\nv_lshlrev_b32 v7, 3, v9\nv_cvt_f32_u32 v7, v7\nv_mul_f32 v7, v7, v6")
        A(f"v_and_b32 v8, 1, v1\nv_cvt_f32_u32 v8, v8\nv_fmac_f32 v7, {fbits(0.25)}, v8")
        gen_cos(A, E, 0, 2, CT)
        A(f"v_bfe_u32 v8, v1, 2, 2\nv_lshlrev_b32 v4, 6, v8\nv_lshl_add_u32 v4, v9, 11, v4\nv_bfe_u32 v11, v1, 4, 1\nv_lshl_add_u32 v4, v11, 5, v4")
        A(f"v_and_b32 v8, 1, v1\nv_lshl_add_u32 v4, v8, 4, v4\nv_bfe_u32 v8, v1, 1, 1\nv_lshl_add_u32 v4, v8, 3, v4\nv_add_u32 v4, {L_W}, v4")
        A(f"s_mul_i32 s3, s20, {16*WF}\ns_add_u32 s3, s3, {WH}\nv_and_b32 v5, 15, v1\nv_lshlrev_b32 v5, 4, v5\nv_mul_u32_u24 v8, {2*WF}, v9\nv_add3_u32 v5, v5, v8, s3")
        for n in range(1, 8): A(f"s_mov_b32 s{40+n}, {(4*(n>>1) + (n&1))*WF}")
        A("s_cmp_eq_u32 s63, 0\ns_cbranch_scc1 L_nox2")
        gen_cos(A, E, 2, 8, CT)
        if o['dbg']: st.mark(A, 14)
        xd(o['xfirst'], 18)
        if o['dbg']: st.mark(A, 9)
        if o['wlate']: A("s_branch L_tab0\nL_nox2:\ns_waitcnt vmcnt(0)\nL_tab0:")
        else: A("L_nox2:")
        if tab_here: self.table(L_TAB, D)
        A("s_cmp_eq_u32 s63, 0\ns_cbranch_scc1 L_nox3\ns_waitcnt vmcnt(18) lgkmcnt(0)\ns_branch L_witems\nL_nox3:\ns_waitcnt vmcnt(0) lgkmcnt(0)")
        A("L_witems:")
        if self.f2 and o['staged']: st.mark(A, 1)
        A("s_barrier\ns_cmp_eq_u32 s29, 0\ns_cbranch_scc1 L_wdone")
        A("L_witem:")
        for d in range(4):
            A.all([f"ds_read_b64_tr_b16 v[{B+8*d+2*u}:{B+8*d+2*u+1}], v4 offset:{4096*(u>>1)+1024*(u&1)+256*d}" for u in range(4)])
            if d == 2: A("s_waitcnt lgkmcnt(8)")
        A("s_mul_i32 s33, s28, 7282\ns_lshr_b32 s33, s33, 16\ns_mul_i32 s34, s33, 9\ns_sub_u32 s34, s28, s34\ns_lshl_b32 s34, s34, 1\ns_lshl_b32 s33, s33, 8")
        A(f"v_add_u32 v8, s34, v11\nv_cmp_le_u32 vcc, 9, v8\nv_mul_u32_u24 v8, 18432, v8\nv_add_u32 v12, {(9216 - 9*18432) & 0xffffffff}, v8\nv_cndmask_b32 v8, v8, v12, vcc\nv_add3_u32 v12, v5, v8, s33")
        def wm(d):
            dd = D + 16*(d & 1); r = B + 8*d
            A(f"s_waitcnt lgkmcnt({12-4*d})")
            A(f"v_mfma_f32_32x32x16_bf16 v[{dd}:{dd+15}], v[{E}:{E+3}], v[{r}:{r+3}], 0")
            A(f"v_mfma_f32_32x32x16_bf16 v[{dd}:{dd+15}], v[{E+4}:{E+7}], v[{r+4}:{r+7}], v[{dd}:{dd+15}]")
        def wc(d):
            dd = D + 16*(d & 1)
            A.all([f"v_cvt_pk_bf16_f32 v{T+4*n+d}, v{dd+2*n}, v{dd+2*n+1}" for n in range(8)])
        wm(0); wm(1); A("s_nop 8"); wc(0); wm(2); wc(1); wm(3); A("s_nop 0"); wc(2); A("s_nop 2"); wc(3)
        wst = [f"buffer_store_dwordx4 v[{T+4*n}:{T+4*n+3}], v12, s[12:15], " + (f"s{40+n}" if n else "0") + " offen sc1" for n in range(8)]
        A("s_cmp_eq_u32 s63, 1\ns_cbranch_scc1 L_wdone")
        for n, q in enumerate(wst):
            if o['wthr'] is not None and n % 2 == 0: A(f"s_waitcnt vmcnt({o['wthr']})")
            A(q)
        A("v_add_u32 v4, 8192, v4\ns_add_u32 s28, s28, 1\ns_cmp_lt_u32 s28, s32\ns_cbranch_scc1 L_witem")
        A("L_wdone:")
        if tab_here: self.tab_reads()
        A("s_cmp_eq_u32 s63, 0\ns_cbranch_scc1 L_p1done")
        A("v_bfe_u32 v8, v1, 2, 2\nv_lshl_add_u32 v8, v9, 3, v8\nv_mul_u32_u24 v4, 576, v8")
        A("v_bfe_u32 v8, v1, 1, 1\nv_mul_u32_u24 v8, 288, v8\nv_add_u32 v4, v4, v8")
        A("v_bfe_u32 v8, v1, 4, 1\nv_lshl_add_u32 v4, v8, 4, v4\nv_and_b32 v8, 1, v1\nv_lshl_add_u32 v4, v8, 3, v4\nv_add_u32 v5, 36864, v4")
        A("s_mul_i32 s33, s23, 9363\ns_lshr_b32 s33, s33, 16\ns_mul_i32 s33, s33, 7\ns_sub_u32 s33, s23, s33")
        A("s_and_b32 s34, s33, 4\ns_bfe_u32 s33, s33, 0x10001\ns_or_b32 s34, s34, s33\ns_lshl_b32 s34, s34, 4")
        A(f"s_mul_i32 s33, s23, {XP}\ns_mul_i32 s35, s20, {16*FS}\ns_add_u32 s33, s33, s35")
        if XH: A(f"s_add_u32 s33, s33, {XH}")
        A(f"v_and_b32 v3, 31, v1\nv_lshlrev_b32 v3, 2, v3\nv_xor_b32 v3, s34, v3\nv_mul_u32_u24 v8, {2*FS}, v9\nv_add3_u32 v3, v3, v8, s33")
        XS = (None, 48, 49, 50, 51, 64, 65, 66)
        for n in range(1, 8): A(f"s_mov_b32 s{XS[n]}, {(4*(n>>1) + (n&1))*FS}")
        A("s_waitcnt vmcnt(0) lgkmcnt(0)\ns_barrier")
        st.mark(A, 3)
        def rd(c, ks):
            r = B + 4*ks
            base, k2 = ('v4', ks) if ks < 4 else ('v5', ks-4)
            return [f"ds_read_b64_tr_b16 v[{r+2*u}:{r+2*u+1}], {base} offset:{(16*k2+4*u)*576+32*c}" for u in range(2)]
        def outp(c):
            d = D + 16*(c & 1)
            return [(f"v_cvt_pk_bf16_f32 v{d+2*n}, v{d+2*n}, v{d+2*n+1}",
                     f"buffer_store_dword v{d+2*n}, v3, s[12:15], " + (f"s{XS[n]}" if n else "0") + f" offen offset:{128*c} sc1") for n in range(8)]
        PRE = 4
        seq = [(c, ks) for c in range(9) for ks in range(8)]
        for t in range(PRE): A.all(rd(*seq[t]))
        pend = []; wq = list(wst) if nx else []
        for t, (c, ks) in enumerate(seq):
            A(f"s_waitcnt lgkmcnt({2*min(PRE-1, len(seq)-1-t)})")
            d = D + 16*(c & 1); r = B + 4*ks
            A(f"v_mfma_f32_32x32x16_bf16 v[{d}:{d+15}], v[{E+4*ks}:{E+4*ks+3}], v[{r}:{r+3}], " + ("0" if ks == 0 else f"v[{d}:{d+15}]"))
            if t + PRE < len(seq): A.all(rd(*seq[t+PRE]))
            if wq and t >= o['wat'] and (t - o['wat']) % o['wevery'] == 0: A(wq.pop(0))
            if ks == 3 and c > 0:
                pend = outp(c-1)
                if o['xthr'] is not None and 8*(c-1) > o['xthr']: A(f"s_waitcnt vmcnt({o['xthr']})")
            for _ in range(2):
                if pend: A.all(pend.pop(0))
        A.all(wq)
        A("s_nop 11")
        for ab in outp(8): A.all(ab)
        if self.f2 and not self.f1:
            A(f"s_lshl_b32 s3, s23, 10\ns_add_u32 s3, s3, {FL}\nv_lshl_add_u32 v8, v0, 2, s3\nv_mov_b32 v9, 0\nbuffer_store_dword v9, v8, s[12:15], 0 offen sc1")
        A("L_p1done:")
        st.mark(A, 4)

    def p2_setup(self):
        A = self.A
        A(f"s_mul_i32 s65, s36, {WF}\ns_add_u32 s65, s65, {WH}\ns_mul_i32 s64, s20, {2*18432}\ns_add_u32 s64, s64, s65")
        A(f"s_and_b32 s3, s20, 1\ns_mul_i32 s3, s3, 9216\ns_add_u32 s65, s65, s3\ns_add_u32 s65, s65, {8*18432}")
        A("v_add_u32 v3, 9216, v2\nv_add_u32 v10, 18432, v2\nv_add_u32 v14, 27648, v2")
        A(f"s_mul_i32 s38, s36, {FS}\ns_mul_i32 s3, s37, {42*XP}\ns_add_u32 s38, s38, s3\ns_lshl_b32 s39, s20, 12\ns_add_u32 s38, s38, s39\ns_add_u32 s39, s39, {L_X}")
        if XH: A(f"s_add_u32 s38, s38, {XH}")

    def p2_setup2(self):
        A = self.A
        A("s_cmp_eq_u32 s20, 3\ns_cselect_b32 s3, 16, 64\nv_cmp_gt_u32 vcc, s3, v1\nv_or_b32 v8, 0x80000000, v2\ns_nop 0\nv_cndmask_b32 v12, v8, v2, vcc")
        A(f"v_and_b32 v9, 7, v1\nv_mul_u32_u24 v4, {XP}, v9\nv_bfe_u32 v11, v1, 3, 1\nv_lshl_add_u32 v4, v11, 5, v4")
        A("v_lshrrev_b32 v9, 1, v9\nv_lshrrev_b32 v11, 4, v1\nv_xor_b32 v9, v9, v11")
        A("v_and_b32 v8, 1, v9\nv_lshl_add_u32 v4, v8, 4, v4\nv_lshrrev_b32 v8, 1, v9\nv_lshl_add_u32 v4, v8, 6, v4")
        A(f"s_lshr_b32 s33, s20, 1\ns_xor_b32 s34, s33, 1\ns_mul_i32 s3, s34, {7*XP}\ns_add_u32 s3, s3, {L_X}\nv_add_u32 v5, s3, v4")
        A(f"s_mul_i32 s3, s33, {7*XP}\ns_add_u32 s3, s3, {L_X}\nv_add_u32 v4, s3, v4")
        A(f"s_mul_i32 s35, s37, {42*YA}\ns_lshl_b32 s3, s36, 8\ns_add_u32 s35, s35, s3\ns_add_u32 s35, s35, {YH}")
        A(f"s_mul_i32 s33, s33, {7*YA}\ns_add_u32 s33, s33, s35\ns_mul_i32 s34, s34, {7*YA}\ns_add_u32 s34, s34, s35\ns_mul_i32 s3, s20, {2*YC}")
        A("s_add_u32 s34, s34, s3\ns_add_u32 s3, s33, s3\nv_lshl_add_u32 v6, v1, 2, s3\nv_lshl_add_u32 v7, v1, 2, s34")
        A(f"s_and_b32 s3, s20, 1\ns_lshl_b32 s3, s3, 6\ns_add_u32 s3, s3, s33\ns_add_u32 s3, s3, {8*YC}")
        A(f"v_and_b32 v8, 15, v1\nv_lshl_add_u32 v8, v8, 2, s3\nv_lshrrev_b32 v9, 5, v1\nv_lshl_add_u32 v8, v9, 7, v8")
        A(f"v_and_b32 v11, 1, v11\nv_mul_u32_u24 v9, {4*YA}, v11\nv_add_u32 v8, v8, v9\nv_lshlrev_b32 v11, 31, v11\nv_or_b32 v9, v8, v11")
        for n in range(1, 7): A(f"s_mov_b32 s{40+n}, {n*YA}")
        for n in range(7): A(f"s_mov_b32 s{(47, 48, 49, 50, 51, 30, 31)[n]}, {n*YA+YC}")
        A("s_mov_b32 s66, 0x80000000")

    def xdma(self, g):
        ops = []
        for n in range(4):
            pre = f"s_add_u32 m0, s39, {16384*g}\ns_add_u32 s35, s38, {16384*g}\n" if n == 0 else ""
            ops.append((pre, f"buffer_load_dwordx4 {'v12' if (g, n) == (2, 3) else 'v2'}, s[12:15], s35 offen offset:{1024*n} {self.ld} lds", ('x', g)))
        return ops

    def sync1(self):
        A, o, st = self.A, self.o, self.st
        srd(A, 56, 's54', 's55', 256)
        A(f"v_and_b32 v156, 3, v1\nv_lshlrev_b32 v156, 2, v156\n{self.rdy}")
        self.p2_setup(); self.p2_setup2()
        A(f"s_mul_i32 s3, s20, 11\nv_min_u32 v13, 10, v1\nv_add_u32 v13, s3, v13\nv_min_u32 v13, 41, v13\ns_mul_i32 s3, s37, {42*128}\ns_add_u32 s3, s3, {FL}\nv_lshl_add_u32 v13, v13, 7, s3")
        A("s_waitcnt vmcnt(0)")
        spin(A, 'rdy', self.rdy, 'v157', 1, 8)
        for k in range(4): A(f"v_readlane_b32 s{24+k}, v157, {k}")
        A(f"s_cmp_eq_u32 s63, 1\ns_cselect_b32 s3, s23, s2\ns_lshl_b32 s3, s3, 7\ns_add_u32 s3, s3, {FL}\nv_mov_b32 v156, s3")
        self.signal(0, 'p1')
        st.mark(A, 5)
        self.flag_addr()
        A("s_cmp_lt_u32 s2, 249\ns_cbranch_scc1 L_go_sp\nv_mov_b32 v155, 0\nv_readfirstlane_b32 s3, v13\ns_nop 1\nv_mov_b32 v154, s3")
        spin(A, 'sp', self.poll.replace('v13', 'v154'), 'v155', 's24', 24)
        A("v_mov_b32 v155, 0")
        spin(A, 'px', self.poll, 'v155', 's24', o['sleep1'])
        A(f"s_mul_i32 s3, s20, 21\nv_min_u32 v13, 20, v1\nv_add_u32 v13, s3, v13\nv_min_u32 v13, 80, v13\nv_lshlrev_b32 v13, 7, v13\nv_add_u32 v13, {FL + 168*128}, v13")
        A("s_barrier")
        st.mark(A, 2)
        for g in range(3):
            for pre, q, _ in self.xdma(g): A(pre); A(q)
            A(f"s_mov_b32 s62, {g+1}")
            if g >= o['xmin'] - 1:
                A(f"{self.poll}\ns_waitcnt vmcnt(0)")
                if g < 2: A("v_cmp_ne_u32 vcc, s24, v155\ns_nop 4\ns_cbranch_vccz L_go_pw")
        spin(A, 'pw', self.poll, 'v155', 's24', o['sleep'])
        A("s_barrier")

    def phase2(self):
        A, o, st, ld = self.A, self.o, self.st, self.ld
        vm = self.vm = VM(A)
        base = 0
        xdma = self.xdma
        def wld(c, cti):
            a = (cti*9 + c)*4
            so, v = ('s64', f"v{(2, 3, 10, 14)[cti]}") if cti < 4 else ('s65', 'v2')
            pre = "s_add_u32 s64, s64, 4096\ns_add_u32 s65, s65, 4096\n" if (cti == 0 and c and c & 3 == 0) else ""
            return (pre, f"buffer_load_dwordx4 a[{a}:{a+3}], {v}, s[12:15], {so} offen offset:{1024*(c&3)} {ld}", ('w', c))
        q = [wld(c, cti) for c in range(9) for cti in range(5)]
        pos = 5*o['xlate']
        if self.f1:
            q = q[:pos] + [('cond', None, 1)] + q[pos:]
        else:
            q = xdma(0) + q[:pos] + xdma(1) + (xdma(2) if o['x2at'] is None else []) + q[pos:]
        def cond(g):
            A(f"s_cmp_gt_u32 s62, {g}\ns_cbranch_scc1 L_havex{g}")
            for pre, s, _ in xdma(g): A(pre); A(s)
            A(f"L_havex{g}:")
            vm.mark(('x', g))
        def issue(n):
            for _ in range(n):
                if q:
                    pre, s, tag = q.pop(0)
                    if pre == 'cond': cond(tag)
                    else: A(pre); vm.op(s, tag)
        st.mark(A, 6)
        issue(o['p2pre'] - (4 if self.f1 else 0))
        if not self.f1:
            self.p2_setup2()
            if self.f2:
                self.flag_addr(); A("s_mov_b32 s25, 1\ns_mov_b32 s26, 1\ns_mov_b32 s27, 1\nv_mov_b32 v32, v8\nv_mov_b32 v33, v9"); self.table(L_TAB, 40); A("v_mov_b32 v8, v32\nv_mov_b32 v9, v33\ns_waitcnt lgkmcnt(0)")
        if self.f2: self.p3_ids()
        XR, XQ = 16, 32
        SETS = (40, 80, 112, 80, 40, 80)
        def acc(tile, cti, comp): return SETS[tile] + 8*cti + 4*comp
        order = [(tb, c) for c in range(9) for tb in range(2)] + [(t, c) for t in range(2, 6) for c in range(9)]
        def xrd(u):
            t, c = order[u]; r = XR + 4*(u & 3)
            return f"ds_read_b128 v[{r}:{r+3}], v{4+(t&1)} offset:{(t>>1)*14*XP + 128*c}"
        def store(v, addr, so): return f"buffer_store_dword v{v}, {addr}, s[12:15], {so} offen sc1"
        def outs(t):
            gs = []; tb = t & 1; adr = f"v{6+tb}"
            for j in range(2):
                p0, p1 = acc(t, 2*j, 0), acc(t, 2*j+1, 0)
                V = [f"v_cvt_pk_bf16_f32 v{p+r}, v{p+r}, v{p+4+r}" for p in (p0, p1) for r in range(4)]
                V += [f"v_permlane16_swap_b32 v{p0+r}, v{p1+r}" for r in range(4)]
                S = []
                for n in (0, 4, 1, 5, 2, 6, 3):
                    so = (f"s{40+n}" if n else "0") if j == 0 else f"s{(47, 48, 49, 50, 51, 30, 31)[n]}"
                    S.append([store((p0 if n < 4 else p1) + (n & 3), adr, so)])
                if j: S[-1].append(f"v_add_u32 {adr}, {14*YA}, {adr}")
                gs.append((V, S))
            if tb == 0:
                p = acc(t, 4, 0)
                V = [f"v_cvt_pk_bf16_f32 v{p+r}, v{p+r}, v{p+4+r}" for r in range(4)]
                S = [[store(p+r, 'v8' if r < 3 else 'v9', f"s{40+r}" if r else "0")] for r in range(4)]
                S[-1] += [f"v_add_u32 v8, {14*YA}, v8", f"v_add_u32 v9, {14*YA}, v9"]
                gs.append((V, S))
            return [[V, S, t] for V, S in gs]
        pend = []; credit = [0.0]
        def put_store():
            g = pend[0]; ops = g[1].pop(0)
            vm.op(ops[0], ('y', g[2] >> 1)); A.all(ops[1:])
            if not g[1]: pend.pop(0)
        def put_valu():
            for g in pend[:2]:
                if g[0]: A(g[0].pop(0)); return True
            return False
        def slot(n):
            if pend and not pend[0][0] and credit[0] >= 1:
                credit[0] -= 1; put_store(); n -= 1
            for _ in range(n): put_valu()
        def flush(upto=None):
            while pend and (upto is None or any(g[2] == upto for g in pend)):
                if pend[0][0]: put_valu()
                else: put_store(); put_valu()
        if not self.f1: vm.wait(('x', 0)); A("s_barrier")
        if self.f2 and not self.f1: self.tab_reads()
        st.mark(A, 7)
        for u in range(3): A(xrd(u))
        for u in range(54):
            t, c = order[u]
            ncol = 4 if t & 1 else 5
            if u < 18 and t == 0:
                while any(tag == ('w', c) for _, _, tag in q): issue(1)
                vm.wait(('w', c))
            if u == o['x1w']:
                issue(100); vm.wait(('x', 1)); A("s_barrier")
                for z in range(18, u+3): A(xrd(z))
            if u == o['x2at']:
                if self.f1: cond(2)
                else: q.extend(xdma(2)); issue(100)
            if u == 33: vm.wait(('x', 2)); A("s_barrier")
            if self.f2 and o['staged']:
                if u == o['ysig1']:
                    assert u > 19 and not any(g[2] < 2 for g in pend)
                    vm.wait(('y', 0)); self.signal(base+1, 'y1')
                if u == o['ysig2']:
                    assert u > 37 and not any(g[2] < 4 for g in pend)
                    vm.wait(('y', 1)); self.signal(base+2, 'y2')
                if u == o['ypollat']: vm.op(self.poll, 'poll')
            if u == 19: pend.extend(outs(1) + outs(0))
            if c == 1 and u > 19: pend.extend(outs(t-1))
            A(f"s_waitcnt lgkmcnt({min(2, 53-u, 17-u if u < o['x1w'] else 2)})")
            x = XR + 4*(u & 3)
            for comp in range(2):
                for cti in range(ncol):
                    d = acc(t, cti, comp); a = (cti*9 + c)*4; xs = XQ if comp else x
                    A(f"v_mfma_f32_16x16x32_bf16 v[{d}:{d+3}], v[{xs}:{xs+3}], a[{a}:{a+3}], " + ("0" if c == 0 else f"v[{d}:{d+3}]"))
                    if comp == 0 and cti < 2:
                        for z in ((2*cti, 2*cti+1) if 'r' not in o['skip'] else ()): A(f"v_pk_add_u16 v{XQ+z}, v{x+z}, s66 op_sel:[1,0] op_sel_hi:[0,1]")
                    elif comp == 0 and cti == 2:
                        if u + 3 < 54 and not (u < o['x1w'] and u + 3 >= 18): A(xrd(u+3))
                        slot(1)
                    else:
                        credit[0] = min(credit[0] + o['srate'], 1.9)
                        slot(2 if (cti & 1 or o['dense']) else 1)
                        if u < 18 and comp == 1 and cti < o['p2rate']: issue(1)
            if u >= 18 and c == 8 and t < 5:
                prev = [z for z in range(t) if SETS[z] == SETS[t+1]]
                if prev: flush(prev[-1])
            if u == 17: st.mark(A, 8)
        flush()
        st.mark(A, 9)
        if self.f2: self.p3_setup()
        else: A("s_nop 7")
        pend.extend(outs(5)); flush()

    def p3_ids(self):
        A = self.A
        A("s_mul_i32 s23, s21, 31\ns_min_u32 s3, s21, 4\ns_add_u32 s23, s23, s3\ns_add_u32 s23, s23, s22")
        A("s_mul_i32 s28, s23, 1041\ns_lshr_b32 s28, s28, 16\ns_min_u32 s28, s28, 3\ns_mul_i32 s3, s28, 63\ns_sub_u32 s29, s23, s3\ns_lshl_b32 s29, s29, 1\ns_lshr_b32 s3, s20, 1\ns_add_u32 s29, s29, s3")
        if self.o['items'] == 'ct': A("s_mul_i32 s29, s29, 3")
        if self.o['ostage']:
            A("s_mul_i32 s3, s28, 63\ns_sub_u32 s23, s23, s3\ns_lshl_b32 s23, s23, 2\ns_add_u32 s3, s23, s20\ns_mul_i32 s29, s3, 3641\ns_lshr_b32 s29, s29, 16")
            A("s_mul_i32 s29, s29, 9\ns_sub_u32 s3, s3, s29\ns_sub_u32 s32, s3, s29\ns_cmp_ge_u32 s32, 9\ns_cselect_b32 s32, 1, 0\ns_cselect_b32 s29, 9, 0\ns_sub_u32 s29, s3, s29")
        else:
            A("s_and_b32 s32, s20, 1")
        A(f"s_lshl_b32 s3, s28, 2\ns_add_u32 s3, s3, s20\ns_lshl_b32 s3, s3, 11\ns_add_u32 s3, s3, {FL + 32768*(1 if self.o['staged'] else 3)}\nv_and_b32 v13, 15, v1\nv_lshl_add_u32 v13, v13, 7, s3")

    def p3_setup(self):
        A = self.A
        A(f"s_nop 0\ns_mul_i32 s38, s28, {42*YA}\ns_mul_i32 s3, s29, {YC}\ns_add_u32 s38, s38, s3\ns_lshl_b32 s3, s32, 7\ns_add_u32 s38, s38, s3\ns_add_u32 s38, s38, {YH}")
        A("s_mul_i32 s39, s20, 24576\nv_lshrrev_b32 v3, 3, v1\nv_lshl_add_u32 v5, v3, 7, v2")

    def phase3(self):
        A, o, st, ld = self.A, self.o, self.st, self.ld
        base = 0
        bypair = o['items'] != 'ct'
        if self.f2:
            vm = self.vm
            A("s_cmp_ge_u32 s2, 252\ns_cbranch_scc0 L_p3\ns_waitcnt vmcnt(0)")
            self.signal(base+3, 'y3x')
            A("s_branch L_fin\nL_p3:")
        else:
            vm = VM(A)
        def outaddr():
            A("s_mul_i32 s33, s29, 7282\ns_lshr_b32 s33, s33, 16\ns_mul_i32 s3, s33, 9\ns_sub_u32 s34, s29, s3")
            A(f"s_lshr_b32 s3, s28, 1\ns_mul_i32 s3, s3, {XB}\ns_add_u32 s16, s52, s3\ns_addc_u32 s17, s53, 0\ns_mov_b32 s18, {XB}\ns_mov_b32 s19, 0x00020000")
            A(f"s_and_b32 s3, s28, 1\ns_mul_i32 s3, s3, 42\ns_add_u32 s33, s33, s3\ns_mul_i32 s33, s33, {192*288}\ns_mul_i32 s3, s32, 288\ns_add_u32 s33, s33, s3\ns_lshl_b32 s3, s34, 5\ns_add_u32 s33, s33, s3")
            A("v_and_b32 v3, 31, v1\nv_lshrrev_b32 v4, 5, v1\nv_mul_u32_u24 v6, 576, v3\nv_lshl_add_u32 v6, v4, 4, v6\nv_add_u32 v6, s33, v6")
            if o['ostage']:
                A("v_bfe_u32 v7, v1, 1, 2\nv_add_u32 v7, s23, v7\nv_mul_u32_u24 v8, 3641, v7\nv_lshrrev_b32 v8, 16, v8\nv_lshlrev_b32 v7, 5, v7")
                A(f"v_mul_u32_u24 v8, {192*288 - 576}, v8\nv_and_b32 v9, 1, v1\nv_lshl_add_u32 v7, v9, 4, v7\nv_lshrrev_b32 v9, 3, v1\nv_mul_u32_u24 v6, 576, v9\nv_add3_u32 v6, v6, v7, v8")
                A(f"s_and_b32 s3, s28, 1\ns_mul_i32 s3, s3, {42*192*288}\ns_mul_i32 s33, s20, {8*576}\ns_add_u32 s3, s3, s33\nv_add_u32 v6, s3, v6")
                A(f"v_xor_b32 v8, v9, v1\nv_and_b32 v8, 7, v8\nv_lshlrev_b32 v8, 4, v8\nv_lshl_add_u32 v8, v9, 7, v8\ns_lshl_b32 s3, s20, 10\ns_add_u32 s3, s3, {L_O}\nv_add_u32 v8, s3, v8")
                A(f"s_lshl_b32 s3, s20, 1\nv_add_u32 v7, s3, v4\nv_xor_b32 v7, v7, v1\nv_and_b32 v7, 7, v7\nv_lshlrev_b32 v7, 4, v7\nv_lshl_add_u32 v7, v3, 7, v7\nv_add_u32 v7, {L_O}, v7")
            A("v_lshl_add_u32 v4, v1, 2, s39\ns_mov_b32 s33, 0x7fffffff")
        WN = o['ywin']
        nxt = [0]
        def issue():
            j = nxt[0]
            if j >= 24: return
            nxt[0] += 1
            i, ks = divmod(j, 8)
            if self.f2 and o['staged'] and ks == 0:
                vm.wait('poll'); spin(A, f"y{i}", self.poll, 'v155', f"s{25+i}", o['sleep']); A("s_barrier\nv_add_u32 v13, 32768, v13")
            if ks & 3 == 0: A(f"s_add_u32 m0, s39, {8192*i + 1024*ks}")
            if j: A(f"s_add_u32 s38, s38, {1024 if ks & 3 else (5120 if ks else (14*YA if bypair else YC) - 11264)}")
            else: A("s_nop 0")
            vm.op(f"buffer_load_dwordx4 v5, s[12:15], s38 offen offset:{1024*(ks&3)} {ld} lds", ('yi', j))
            if self.f2 and o['staged'] and i < 2 and ks == 7 - o['ypre']: vm.op(self.poll, 'poll')
        if self.f2 and not o['staged']:
            outaddr()
            A("s_waitcnt vmcnt(0)"); self.signal(base+3, 'y3')
            st.mark(A, 10)
            A("v_mov_b32 v155, 0")
            spin(A, 'y', self.poll, 'v155', 's27', o['sleep'])
            A("s_barrier")
            st.mark(A, 1)
        for _ in range(min(WN, o['yfirst'])): issue()
        if self.f2:
            if o['staged']: vm.wait(('y', 2)); self.signal(base+3, 'y3')
        else:
            self.table(98304, 80); A("s_waitcnt lgkmcnt(0)\ns_barrier"); self.tab_reads()
        if self.f2 and o['staged']: st.mark(A, 10)
        while nxt[0] < WN: issue()
        if not (self.f2 and not o['staged']): outaddr()
        Y, D, T, O = 16, 32, 128, 136
        def dreg(i, tt): return D + 48*(i & 1) + 16*tt
        def yrd(j):
            y = Y + 4*(j & 3)
            return [f"ds_read2st64_b32 v[{y+2*u}:{y+2*u+1}], v4 offset0:{4*j+2*u} offset1:{4*j+2*u+1}" for u in range(2)]
        def gate(i, tt):
            d = dreg(i, tt); g = d + 8; ops = []
            for u in range(8): ops += [f"v_exp_f32 v{T+u}, -abs(v{d+u})", f"v_exp_f32 v{g+u}, v{g+u}"]
            N = 144
            if o['pk'] == 2 or (o['pk'] == 1 and i == 2):
                P = lambda r: f"v[{r}:{r+1}]"
                for u in range(0, 8, 2): ops.append(f"v_pk_fma_f32 {P(T+u)}, {P(T+u)}, {P(T+u)}, 1.0 op_sel_hi:[1,1,0]")
                for u in range(0, 8, 2): ops.append(f"v_pk_fma_f32 {P(g+u)}, {P(g+u)}, {P(T+u)}, {P(T+u)}")
                for u in range(0, 8, 2): ops += [f"v_rcp_f32 v{g+u}, v{g+u}", f"v_rcp_f32 v{g+u+1}, v{g+u+1}", f"v_pk_add_f32 {P(T+u)}, 2.0, {P(T+u)} op_sel_hi:[0,1] neg_lo:[0,1] neg_hi:[0,1]"]
                for u in range(8): ops.append(f"v_bfi_b32 v{d+u}, s33, v{T+u}, v{d+u}")
                for u in range(0, 8, 2): ops.append(f"v_pk_mul_f32 {P(d+u)}, {P(d+u)}, {P(g+u)}")
            else:
                for u in range(8): ops.append(f"v_fma_f32 v{T+u}, v{T+u}, v{T+u}, 1.0")
                for u in range(8): ops += [f"v_sub_f32 v{N+u}, 2.0, v{T+u}", f"v_fmac_f32 v{T+u}, v{g+u}, v{T+u}"]
                for u in range(8): ops += [f"v_rcp_f32 v{T+u}, v{T+u}", f"v_bfi_b32 v{d+u}, s33, v{N+u}, v{d+u}"]
                for u in range(8): ops.append(f"v_mul_f32 v{d+u}, v{d+u}, v{T+u}")
            t = O + 4*((3*i+tt) & 1)
            for u in range(4): ops.append(f"v_cvt_pk_bf16_f32 v{t+u}, -v{d+2*u}, -v{d+2*u+1}")
            if o['ostage']:
                ops.append(f"ds_write_b128 v7, v[{t}:{t+3}] offset:{4096*(3*i+tt)}")
                return ops
            ops.append(f"buffer_store_dwordx4 v[{t}:{t+3}], v6, s[16:19], 0 offen {o['opol']}")
            step = 32*576 if tt < 2 else ((14*192*288 if bypair else 32) - 64*576) & 0xffffffff
            ops.append(f"v_add_u32 v6, {step}, v6")
            return ops
        cost = lambda s: 8 if (s.startswith('v_exp') or s.startswith('v_rcp')) else 4
        fill = []
        def emit(budget):
            while fill and budget > 0:
                s = fill.pop(0); budget -= cost(s)
                if s.startswith('buffer_store'): vm.op(s, 'ost')
                else: A(s)
                if s.startswith('ds_'): nds[0] += 1
        nds = [0]
        def oread(ti, r): return f"ds_read_b128 v[{r}:{r+3}], v8 offset:{4096*ti}"
        def ostore(ti, r):
            step = 32*576 if ti % 3 < 2 else 14*192*288 - 64*576
            return [f"buffer_store_dwordx4 v[{r}:{r+3}], v6, s[16:19], 0 offen {o['opol2']}", f"v_add_u32 v6, {step}, v6"]
        def weave(ops, extra, start, every):
            out = []
            for n, z in enumerate(ops):
                out.append(z)
                if extra and n >= start and (n - start) % every == 0: out += extra.pop(0)
            for e in extra: out += e
            return out
        for j in range(25):
            if j < 24:
                vm.wait(('yi', j)); A.all(yrd(j)); nds[0] = 0; issue()
                if j == 0: st.mark(A, 11)
            if j == o['wbat']:
                A(f"s_and_b32 s3, s22, {o['wbmask']}\ns_or_b32 s3, s3, s20\ns_cbranch_scc1 L_nowb\nbuffer_wbl2 sc1\nL_nowb:")
            if j >= 1:
                i, ks = divmod(j-1, 8)
                emit(40)
                A(f"s_waitcnt lgkmcnt({2 + nds[0] if j < 24 else 0})")
                y = Y + 4*((j-1) & 3)
                for tt in range(3):
                    d = dreg(i, tt); b = TAB + 32*tt + 4*ks
                    A(f"v_mfma_f32_32x32x16_bf16 v[{d}:{d+15}], v[{y}:{y+3}], v[{b}:{b+3}], " + ("0" if ks == 0 else f"v[{d}:{d+15}]"))
                    emit(40)
                if ks == 7:
                    emit(10000)
                    if o['ostage'] and i == 2:
                        R = dreg(1, 0); sync = ["s_waitcnt lgkmcnt(0)", "s_barrier"]; n0 = 3 if o['oearly'] else 0
                        fill.extend(sync + [oread(ti, R + 4*ti) for ti in range(n0, 6)] + ["s_nop 5"])
                        fill.extend(weave(gate(2, 0), [["s_waitcnt lgkmcnt(0)"]] + [ostore(ti, R + 4*ti) for ti in range(n0, 6)], 6, o['oevery']))
                        for tt in (1, 2):
                            r = R + 4*(5 + tt)
                            fill.extend(weave(gate(2, tt), [sync + [oread(5 + tt, r)], ["s_waitcnt lgkmcnt(0)"] + ostore(5 + tt, r)], 5, 8))
                        fill.extend(sync + [oread(8, R + 32), "s_waitcnt lgkmcnt(0)"] + ostore(8, R + 32))
                    elif o['ostage'] and o['oearly'] and i == 1:
                        A("s_waitcnt lgkmcnt(0)\ns_barrier")
                        R = 8; regs = (144, 148, 140)
                        A.all([oread(ti, dreg(0, 0) + 4*ti) for ti in range(3)] + ["s_waitcnt lgkmcnt(0)"])
                        for ti in range(3):
                            z = ostore(ti, dreg(0, 0) + 4*ti); vm.op(z[0], 'ost'); A(z[1])
                        fill.extend(["s_nop 1"] + gate(i, 0) + gate(i, 1) + gate(i, 2))
                    else:
                        fill.extend(["s_nop 9"] + gate(i, 0) + gate(i, 1) + gate(i, 2))
                    st.mark(A, 12 + i)
        emit(10000)
        A("L_fin:")

    def build(self):
        A, o = self.A, self.o
        A("; Dilated causal gated convolution evaluated block-wise in the frequency domain (overlap-save, 128-point")
        A("; negacyclic DFT per parity sequence, 96 outputs per block): phase 1 transforms x and w, phase 2 runs")
        K = NAME + '_kernel'
        k1 = K if (self.f1 and self.f2) else 'xform_kernel'
        k2 = k1 if self.f1 else (K if self.f2 else 'gemm_kernel')
        names = list(dict.fromkeys([k1, k2, K]))
        if len(names) == 1: A("; @launch grid=(256,1,1) block=(256,1,1) lds=163840")
        else:
            for n in names:
                only3 = n == K and not self.f2
                A(f"; @launch kernel={n} grid=({252 if only3 else 256},1,1) block=(256,1,1) lds={122880 if only3 else (131072 if n != k2 else 163840)}")
        A('.amdgcn_target "amdgcn-amd-amdhsa--gfx950"\n.text')
        self.entry(k1, 256, k1, f"L_end_{K}", 0)
        self.phase1()
        if self.f1: self.sync1()
        else:
            self.leave(k1, 5)
            self.entry(k2, 256, k2, f"L_end_{k2}", 2)
            self.p2_setup()
            A("s_waitcnt lgkmcnt(0)"); srd(A, 12, 's8', 's9', WS_BYTES)
        self.phase2()
        if not self.f2:
            self.leave(k2, 10)
            self.entry(K, 252, K, f"L_end_{K}", 1)
            self.p3_ids(); self.p3_setup()
            A("s_waitcnt lgkmcnt(0)"); srd(A, 12, 's8', 's9', WS_BYTES)
            self.st_skip10 = True
        self.phase3()
        self.leave(K, 15)
        A('.section .rodata,"a"')
        for n in names: A.L.append(kd(n, 440 if n == k2 else 256, 256))
        return A.text()

DEF = dict(ostage=True, oearly=False, oevery=6, opol2='sc1', dbg=False, wlate=False, srate=0.45, dense=False, skip='', xmin=1, wthr=None, ythr=None, staged=True, xthr=None, wbat=None, wbmask=0, x1w=18, x2at=18, pk=1, stamps=False, fuse='123', xpol='nt', wpol='nt', ldpol='sc1', opol='', xfirst=9, nx=0, nw=4, wat=0, wevery=1,
           sleep1=16, sleep=2, p2pre=19, p2rate=3, xlate=9, ysig1=40, ysig2=52, ypollat=53, ywin=None, yfirst=None, ypre=2, items=None)
def gen(**kw):
    o = dict(DEF); o.update(kw)
    sg = o['staged'] and o['fuse'] in ('23', '123')
    if not sg: o['ostage'] = False
    for k, v in (('ywin', 5 if sg else 8), ('yfirst', 0 if sg else 8), ('items', 'pair' if sg else 'ct')):
        if o[k] is None: o[k] = v
    return G(o).build()

GROUPS = [('x', list(range(168))), ('w', list(range(168, 246))), ('c', [252, 253, 254, 255])]
if __name__ == '__main__':
    for f in ('123', '12', '23', ''):
        open(f't3/g{f}.s', 'w').write(gen(fuse=f))
```

```python
import gen_g
def addnop(s):
    s = s.replace("; @launch grid=", f"; @launch kernel={gen_g.NAME}_kernel grid=")
    lines = s.split('\n'); i = max(k for k, l in enumerate(lines) if l.startswith('; @launch'))
    lines.insert(i+1, "; @launch kernel=nop_kernel grid=(1,1,1) block=(64,1,1) lds=0")
    s = '\n'.join(lines).replace('.section .rodata,"a"', ".globl nop_kernel\n.p2align 8\n.type nop_kernel,@function\nnop_kernel:\n    s_endpgm\n" + '.section .rodata,"a"')
    return s + gen_g.kd('nop_kernel', 8, 8) + "\n"
open('t3/m0.s','w').write(gen_g.gen(ostage=False))
open('t3/m1.s','w').write(gen_g.gen())
open('t3/m2.s','w').write(gen_g.gen(opol2=''))
open('t3/m3.s','w').write(addnop(gen_g.gen(ostage=False)))
open('t3/m4.s','w').write(addnop(gen_g.gen()))
open('t3/m5.s','w').write(gen_g.gen(opol2='nt', oearly=True))
```
